```python
import torch

def _softmax(x, axis=-1):
    return torch.softmax(x, dim=axis)

def _gelu(x):
    return torch.nn.functional.gelu(x, approximate='tanh')

def _silu(x):
    return torch.nn.functional.silu(x)

def _sigmoid(x):
    return torch.sigmoid(x)

def _layernorm(x, axis=-1, eps=1e-05):
    m = x.mean(dim=axis, keepdim=True)
    v = x.var(dim=axis, keepdim=True, unbiased=False)
    return (x - m) / torch.sqrt(v + eps)

def _scatter_add(tgt, idx, src, axis=0):
    return tgt.clone().index_add_(axis, idx, src)

def _segment_sum(src, seg, n):
    out = torch.zeros((n,) + src.shape[1:], dtype=src.dtype)
    return out.index_add_(0, seg, src)

def _pad(x, pw):
    flat = tuple((v for pair in reversed(pw) for v in pair))
    return torch.nn.functional.pad(x, flat)
kernel_name = 'standalone__ragged_sequences_varlen_flash_attn__ragged'

def setup_inputs():

    _w = lambda a: (lambda t: t.to(torch.bfloat16) if t.is_floating_point() else t)(torch.as_tensor(a))
    cu = torch.tensor([0, 899, 1287, 3063, 3381, 3962, 4737, 5351, 7180], dtype=torch.int64)
    T = int(cu[-1])
    Hq, Hkv, D = (16, 4, 128)
    assert Hq % Hkv == 0
    return {'q': _w((lambda *s: torch.randn(*s, dtype=torch.bfloat16) * 0.8)(T, Hq, D)), 'k': _w((lambda *s: torch.randn(*s, dtype=torch.bfloat16) * 0.8)(T, Hkv, D)), 'v': _w((lambda *s: torch.randn(*s, dtype=torch.bfloat16) * 0.05)(T, Hkv, D)), 'cu': _w(cu)}

def reference(q, k, v, cu):
    T, Hq, D = q.shape
    Hkv = k.shape[1]
    rep = Hq // Hkv
    scale = D ** (-0.5)
    outs = []
    for i in range(len(cu) - 1):
        s, e = (int(cu[i]), int(cu[i + 1]))
        L = e - s
        qi = q[s:e].clone()
        ki = (lambda x, n, axis: torch.repeat_interleave(x, n, dim=axis))(k[s:e], rep, axis=1)
        vi = (lambda x, n, axis: torch.repeat_interleave(x, n, dim=axis))(v[s:e], rep, axis=1)
        logits = torch.einsum('qhd,khd->hqk', qi, ki) * scale
        ar = torch.arange(L)
        neg = (lambda x, dt: x.to(dt))(ar[None, :] > ar[:, None], logits.dtype) * -1000000000.0
        p = _softmax(logits + neg[None, :, :], axis=-1)
        outs.append(torch.einsum('hqk,khd->qhd', p, vi))
    return torch.concatenate(outs, axis=0)
```

```python
import re

REG_RE = re.compile(r'\b([vas])(\d+)\b|\b([vas])\[(\d+):(\d+)\]|\b(vcc|m0|exec|scc)\b')

def regs_of(op):
    out = []
    for m in REG_RE.finditer(op):
        if m.group(1):
            out.append((m.group(1), int(m.group(2))))
        elif m.group(3):
            for i in range(int(m.group(4)), int(m.group(5)) + 1):
                out.append((m.group(3), i))
        else:
            out.append((m.group(6), 0))
    return out

TRANS = ('v_exp_f32', 'v_rcp_f32', 'v_log_f32', 'v_rsq_f32', 'v_sqrt_f32')

class Ins:
    __slots__ = ('text', 'op', 'rd', 'wr', 'kind', 'ops', 'srcC')
    def __init__(self, text):
        self.text = text
        t = text.split(';')[0].strip()
        self.op = t.split()[0] if t else ''
        rest = t[len(self.op):].strip()
        ops = [o.strip() for o in rest.split(',')] if rest else []
        self.ops = ops
        op = self.op
        self.srcC = []
        rd, wr = [], []
        base = op.replace('_e32', '').replace('_e64', '')
        if op.endswith(':') or op.startswith('.') or op == '':
            self.kind = 'label'
        elif op.startswith('v_mfma'):
            self.kind = 'mfma'
            wr = regs_of(ops[0]); rd = regs_of(ops[1]) + regs_of(ops[2]); self.srcC = regs_of(ops[3])
        elif op.startswith('v_cmp'):
            self.kind = 'valu'
            wr = regs_of(ops[0]); rd = sum((regs_of(o) for o in ops[1:]), [])
        elif op.startswith('v_permlane'):
            self.kind = 'valu'
            wr = regs_of(ops[0]) + regs_of(ops[1]); rd = list(wr)
        elif op.startswith('v_readfirstlane') or op.startswith('v_readlane'):
            self.kind = 'valu'
            wr = regs_of(ops[0]); rd = sum((regs_of(o) for o in ops[1:]), [])
        elif op.startswith('v_'):
            self.kind = 'trans' if base in TRANS else 'valu'
            wr = regs_of(ops[0]); rd = sum((regs_of(o) for o in ops[1:]), [])
            if base.startswith('v_fmac') : rd += wr
            if base.startswith('v_cndmask') and len(ops) == 3: rd.append(('vcc', 0))
        elif op.startswith('ds_read'):
            self.kind = 'ds'
            wr = regs_of(ops[0]); rd = regs_of(ops[1].split()[0])
        elif op.startswith('ds_write'):
            self.kind = 'ds'
            rd = sum((regs_of(o.split()[0]) for o in ops), [])
        elif op.startswith('buffer_load'):
            self.kind = 'vmem'
            if ' lds' in t:
                rd = sum((regs_of(o.split()[0]) for o in ops), []) + [('m0', 0)]
            else:
                wr = regs_of(ops[0]); rd = sum((regs_of(o.split()[0]) for o in ops[1:]), [])
        elif op.startswith('global_load'):
            self.kind = 'vmem'
            wr = regs_of(ops[0]); rd = sum((regs_of(o.split()[0]) for o in ops[1:]), [])
        elif op.startswith('buffer_store') or op.startswith('buffer_atomic'):
            self.kind = 'vmem'
            rd = sum((regs_of(o.split()[0]) for o in ops), [])
        elif op.startswith('s_nop'):
            self.kind = 'nop'
        elif op.startswith('s_'):
            self.kind = 'salu'
            if op.startswith(('s_cmp', 's_cbranch', 's_branch', 's_waitcnt', 's_barrier', 's_endpgm', 's_setpc', 's_setprio', 's_sleep')):
                rd = sum((regs_of(o) for o in ops), []) if not op.startswith('s_waitcnt') else []
            else:
                wr = regs_of(ops[0]) if ops else []
                rd = sum((regs_of(o) for o in ops[1:]), [])
        else:
            raise ValueError("unknown op " + text)
        self.rd, self.wr = rd, wr

    def states(self):
        if self.kind == 'label': return 0
        if self.kind == 'nop': return int(self.ops[0]) + 1
        return 1

def check_hazards(seq, name=""):
    probs = []
    pos = []
    p = 0
    for ins in seq:
        pos.append(p); p += ins.states()
    last_valu_wr = {}
    last_trans_wr = {}
    last_mfma_wr = {}
    last_mfma_c = {}
    last_salu_m0 = None
    last_valu_sgpr = {}
    last_store = {}
    def dist(i, j):
        return pos[j] - pos[i] - seq[i].states()
    for j, ins in enumerate(seq):
        k = ins.kind
        if k == 'label': continue
        if k == 'mfma':
            for r in ins.rd + ins.srcC:
                if r in last_valu_wr and dist(last_valu_wr[r], j) < 2:
                    probs.append((name, j, ins.text, 'VALU->MFMA src', seq[last_valu_wr[r]].text))
            for r in ins.rd:
                if r in last_mfma_wr and dist(last_mfma_wr[r], j) < 12:
                    probs.append((name, j, ins.text, 'MFMA D->MFMA A/B', seq[last_mfma_wr[r]].text))
            for r in ins.srcC:
                if r in last_mfma_wr:
                    prod = seq[last_mfma_wr[r]]
                    if prod.wr != ins.srcC and dist(last_mfma_wr[r], j) < 10:
                        probs.append((name, j, ins.text, 'MFMA D->MFMA C overlap', prod.text))
        if k in ('valu', 'trans', 'ds', 'vmem'):
            for r in ins.rd + ins.wr:
                if r in last_mfma_wr and dist(last_mfma_wr[r], j) < 12:
                    probs.append((name, j, ins.text, 'MFMA D->VALU/mem', seq[last_mfma_wr[r]].text))
        if k in ('valu', 'trans'):
            for r in ins.wr:
                if r in last_mfma_c and dist(last_mfma_c[r], j) < 7:
                    probs.append((name, j, ins.text, 'MFMA C WAR', seq[last_mfma_c[r]].text))
                if r in last_store and dist(last_store[r], j) < 2:
                    probs.append((name, j, ins.text, 'store data WAR', seq[last_store[r]].text))
            if k == 'valu' or k == 'trans':
                for r in ins.rd:
                    if k == 'valu' and r in last_trans_wr and dist(last_trans_wr[r], j) < 1:
                        probs.append((name, j, ins.text, 'trans->valu', seq[last_trans_wr[r]].text))
                    if r[0] in ('s', 'vcc') and r in last_valu_sgpr and dist(last_valu_sgpr[r], j) < 2:
                        probs.append((name, j, ins.text, 'VALU sgpr->VALU', seq[last_valu_sgpr[r]].text))
            if ins.op.startswith('v_permlane'):
                for r in ins.rd:
                    if r in last_valu_wr and dist(last_valu_wr[r], j) < 2:
                        probs.append((name, j, ins.text, 'VALU->permlane', seq[last_valu_wr[r]].text))
            if ins.op.startswith('v_readfirstlane') or ins.op.startswith('v_readlane'):
                for r in ins.rd:
                    if r in last_valu_wr and dist(last_valu_wr[r], j) < 1:
                        probs.append((name, j, ins.text, 'VALU->readlane', seq[last_valu_wr[r]].text))
        if k in ('ds', 'vmem', 'mfma'):
            for r in ins.rd + ins.srcC:
                if r in last_trans_wr and dist(last_trans_wr[r], j) < 1:
                    probs.append((name, j, ins.text, 'trans->other', seq[last_trans_wr[r]].text))
        if k == 'vmem':
            for r in ins.rd:
                if r[0] == 's' and r in last_valu_sgpr and dist(last_valu_sgpr[r], j) < 5:
                    probs.append((name, j, ins.text, 'VALU sgpr->VMEM', seq[last_valu_sgpr[r]].text))
            if ('m0', 0) in ins.rd and last_salu_m0 is not None and dist(last_salu_m0, j) < 1:
                probs.append((name, j, ins.text, 'm0->dma', seq[last_salu_m0].text))
        if k in ('valu', 'trans'):
            for r in ins.wr:
                if r[0] in ('v', 'a'):
                    last_valu_wr[r] = j
                    if k == 'trans': last_trans_wr[r] = j
                    else: last_trans_wr.pop(r, None)
                    last_mfma_wr.pop(r, None)
                else:
                    last_valu_sgpr[r] = j
        if k == 'mfma':
            for r in ins.wr:
                last_mfma_wr[r] = j
                last_valu_wr.pop(r, None); last_trans_wr.pop(r, None)
            for r in ins.srcC: last_mfma_c[r] = j
        if k == 'salu':
            if ('m0', 0) in ins.wr: last_salu_m0 = j
            for r in ins.wr: last_valu_sgpr.pop(r, None)
        if k == 'vmem' and ins.op.startswith('buffer_store_dwordx4'):
            for r in regs_of(ins.ops[0]): last_store[r] = j
        if k in ('ds', 'vmem'):
            for r in ins.wr:
                last_valu_wr.pop(r, None); last_trans_wr.pop(r, None); last_mfma_wr.pop(r, None)
    return probs

class Block:
    def __init__(self, name=""):
        self.name = name
        self.ins = []
    def e(self, text):
        for line in text.strip().split('\n'):
            line = line.strip()
            if line: self.ins.append(Ins(line))
    def ext(self, other):
        self.ins.extend(other.ins if isinstance(other, Block) else other)
    def text(self):
        out = []
        for i in self.ins:
            out.append(i.text if i.kind == 'label' else '    ' + i.text)
        return '\n'.join(out) + '\n'
```

```python
import itertools, random
CU = [0, 899, 1287, 3063, 3381, 3962, 4737, 5351, 7180]
LENS = [CU[i+1]-CU[i] for i in range(8)]
NB = [(L+31)//32 for L in LENS]

def seq_jobs(seq, thr):
    nb = NB[seq]
    jobs = []
    b = 0
    while b < nb:
        if b + 1 < nb and b + 1 < thr:
            jobs.append(('A', b, b + 2)); b += 2
        else:
            jobs.append(('B', b, (b + 2)//2)); b += 1
    return jobs

def pack(jobs, nbins, ovh):
    jobs = sorted(jobs, key=lambda j: -j[-1])
    bins = [[] for _ in range(nbins)]
    load = [0.0]*nbins
    for j in jobs:
        i = min(range(nbins), key=lambda k: load[k])
        bins[i].append(j); load[i] += j[-1] + ovh
    improved = True
    while improved:
        improved = False
        mx = max(range(nbins), key=lambda k: load[k])
        best = None
        for a in bins[mx]:
            ca = a[-1] + ovh
            for o in range(nbins):
                if o == mx: continue
                if load[o] + ca < load[mx] - 1e-9:
                    nm = max(load[o] + ca, load[mx] - ca)
                    if best is None or nm < best[0]: best = (nm, a, o, None)
                for b in bins[o]:
                    cb = b[-1] + ovh
                    if cb < ca:
                        nm = max(load[o] + ca - cb, load[mx] - ca + cb)
                        if nm < load[mx] - 1e-9 and (best is None or nm < best[0]): best = (nm, a, o, b)
        if best:
            nm, a, o, b = best
            bins[mx].remove(a); bins[o].append(a); load[mx] -= a[-1] + ovh; load[o] += a[-1] + ovh
            if b is not None:
                bins[o].remove(b); bins[mx].append(b); load[o] -= b[-1] + ovh; load[mx] += b[-1] + ovh
            improved = True
    return bins, load

GROUPS = [[7, 5, 4, 3], [2, 0, 6, 1]]

def build(thr=36, ovh=2.5):
    wg = [None]*256
    stats = []
    for xcd in range(8):
        kvh = xcd // 2
        seqs = GROUPS[xcd % 2]
        jobs = []
        for s in seqs:
            for (kind, b, N) in seq_jobs(s, thr):
                jobs.append((s, kvh, kind, b, N))
        bins, load = pack(jobs, 32, ovh)
        for i in range(32):
            wg[i*8 + xcd] = sorted(bins[i], key=lambda j: (j[2], -j[-1]))
        stats.append((max(load), sum(load)/32, len(jobs)))
    return wg, stats

if __name__ == "__main__":
    print(NB)
    for ovh in (1.5, 2.5, 3.5):
        for thr in (24, 28, 30, 32, 34, 36, 38, 40, 44):
            wg, st = build(thr, ovh)
            print(ovh, thr, st[0], st[1], max(len(w) for w in wg))
```

```python
import sys, struct, math
from asmlib import *
import sched

NAME = "standalone__ragged_sequences_varlen_flash_attn__ragged"
T_TOK = 7180
QBYTES = T_TOK * 16 * 256
KBYTES = T_TOK * 4 * 256
def f32(x): return struct.unpack('<I', struct.pack('<f', x))[0]
C_SCALE = f32(math.log2(math.e) / math.sqrt(128.0))
THR = f32(2.0 ** 40)
NEGBIG = f32(-1.0e30)
LDS_BYTES = 131072 + 4096

MASK = 16; MJ = 32
DK = 48; DV = 52
VADDR = 56; KADDR = 60
MC = 68
L = 70
TT = 74
QVOFF = 78; OVOFF = 79
P = 80
S = 96
O = 128
V_M16 = 14
V_LANE = 15
AQ = 0; AK = 64; AV = 96
SRD_Q, SRD_K, SRD_V, SRD_O = 8, 12, 16, 20
S_C, S_THR, S_OOB, S_W, S_PAIR, S_HP = 24, 25, 26, 27, 28, 29
S_RET = 30
S_TAB = 32
S_J = 36
S_QOFF, S_VOFF, S_REM, S_KUSE, S_VUSE, S_KT = 40, 41, 42, 43, 44, 45
S_T0 = 50
S_M0K = 60
S_M0V = 64
S_RING = 68
S_G0 = 69

def vr(b, n): return f"v[{b}:{b+n-1}]"
def ar(b, n): return f"a[{b}:{b+n-1}]"
def sr(b, n): return f"s[{b}:{b+n-1}]"

def mfma_q(x, s, first_c):
    c = first_c if s == 0 else vr(S + 16*x, 16)
    return f"v_mfma_f32_32x32x16_bf16 {vr(S+16*x,16)}, {ar(AK+4*s,4)}, {ar(AQ+32*x+4*s,4)}, {c}"
def mfma_v(x, j):
    u, db = j // 4, j % 4
    o = vr(O + 64*x + 16*db, 16)
    return f"v_mfma_f32_32x32x16_bf16 {o}, {ar(AV+4*j,4)}, {vr(P+8*x+4*u,4)}, {o}"
def kread(s, slot):
    return f"ds_read_b128 {ar(AK+4*s,4)}, v{KADDR+s} offset:{slot*8192}"
def vread(j, e, slot):
    u, db = j // 4, j % 4
    return f"ds_read_b64_tr_b16 {ar(AV+4*j+2*e,2)}, v{VADDR+db} offset:{32768 + slot*8192 + (16*u+8*e)*256}"
def dma_k(i, suse=S_KUSE):
    return f"buffer_load_dwordx4 v{DK+i}, {sr(SRD_K,4)}, s{suse} offen offset:{i*1024} lds"
def dma_v(i, suse=S_VUSE):
    return f"buffer_load_dwordx4 v{DV+i}, {sr(SRD_V,4)}, s{suse} offen offset:{i*1024} lds"

def opF(x, e): return f"v_fma_f32 v{TT+e%4}, v{S+16*x+e}, s{S_C}, -v{MC+x}"
def opE(x, e): return f"v_exp_f32 v{TT+e%4}, v{TT+e%4}"
def opA(x, e, par):
    src = L + 2*x + (par ^ 1) if e == 0 else L + 2*x + par
    return f"v_add_f32 v{L+2*x+par}, v{src}, v{TT+e%4}"
def opC(x, k): return f"v_cvt_pk_bf16_f32 v{P+8*x+k}, v{TT+(2*k)%4}, v{TT+(2*k+1)%4}"

class Gen:
    def __init__(self):
        self.blocks = {}
        self.order = []
        self.stubs = Block("stubs")
        self.nstub = 0
    def add(self, b):
        self.blocks[b.name] = b; self.order.append(b.name); return b

    def check_site(self, b, x, par):
        k = self.nstub; self.nstub += 1
        b.e(f"s_cbranch_vccnz L_stub{k}")
        b.e(f"L_ret{k}:")
        self.stubs.e(f"L_stub{k}:")
        self.stubs.e(f"s_call_b64 {sr(S_RET,2)}, L_rare_{x}_{par}")
        self.stubs.e(f"s_branch L_ret{k}")

    def plan_mem(self, g):
        cap = [1 if i % 2 == 0 else 2 for i in range(32)]
        cap[15] = 0; cap[31] = 0
        place = {i: [] for i in range(32)}
        kd = [17, 19, 21, 23][:g] if g == 4 else [19, 23]
        vd = [7, 9, 11, 13][:g] if g == 4 else [9, 13]
        for i, gp in enumerate(kd): place[gp].append(('KD', i)); cap[gp] -= 2
        for i, gp in enumerate(vd): place[gp].append(('VD', i)); cap[gp] -= 2
        items = [(16 + s, 30, ('K', s)) for s in range(8)]
        for j in range(8):
            for e in range(2): items.append((24 + j, 38 if j < 4 else 42, ('V', j, e)))
        pend = list(items)
        for t in range(16, 48):
            gp = t % 32
            while cap[gp] > 0:
                c = [it for it in pend if it[0] <= t]
                if not c: break
                it = min(c, key=lambda i: (i[1], i[0]))
                assert it[1] >= t, ("deadline miss", it, t)
                pend.remove(it); cap[gp] -= 1
                place[gp].insert(0, it[2]) if False else place[gp].append(it[2])
        assert not pend
        for gp in place:
            place[gp].sort(key=lambda it: 0 if it[0] in ('K', 'V') else 1)
        return place

    def sm_ops(self, gap, ph):
        ops = []
        s_par = ph % 2
        def elem(idx):
            if 0 <= idx < 16: return (1, idx, s_par, 'b0')
            if 16 <= idx < 32: return (0, idx - 16, s_par ^ 1, 'a1')
            if 32 <= idx < 48: return (1, idx - 32, s_par ^ 1, 'b1')
            return None
        a = elem(gap + 1)
        x, e, par, tag = a; ops.append((tag, opA(x, e, par)))
        if gap % 2 == 0:
            x, e, par, tag = elem(gap); ops.append((tag, opC(x, e // 2)))
        x, e, par, tag = elem(gap + 3); ops.append((tag, opF(x, e)))
        x, e, par, tag = elem(gap + 2); ops.append((tag, opE(x, e)))
        return ops

    def step(self, shape, ph):
        g = 2 if shape == 'A' else 4
        b = Block(f"loop_{shape}_{ph}")
        b.e(f"L_loop_{shape}_{ph}:")
        place = self.plan_mem(g)
        free = {i: [] for i in range(32)}
        seq = []
        for gp in range(32):
            for it in place[gp]:
                if it[0] in ('K', 'V'): seq.append((gp, it))
        def count_after(need_items, wait_gap):
            lin = [(gp - 32, it) for gp, it in seq] + [(gp, it) for gp, it in seq]
            lin = [(t, it) for t, it in lin if t < wait_gap]
            last = max(max(i for i, (t, it) in enumerate(lin) if it == n) for n in need_items)
            return len(lin) - 1 - last
        wk = count_after([('K', s) for s in range(8)], 31)
        free[31].append(f"s_waitcnt lgkmcnt({wk})")
        wv0 = count_after([('V', j, e) for j in range(4) for e in range(2)], 7)
        free[7].append(f"s_waitcnt lgkmcnt({wv0})")
        wv1 = count_after([('V', j, e) for j in range(4, 8) for e in range(2)], 11)
        free[11].append(f"s_waitcnt lgkmcnt({wv1})")
        assert max(wk, wv0, wv1) <= 15
        free[15].append(f"s_waitcnt vmcnt({4*g})")
        free[16].append("s_barrier")
        free[1].append(f"s_cmp_gt_i32 s{S_REM}, 0")
        free[2].append(f"s_cselect_b32 s{S_VUSE}, s{S_VOFF}, s{S_OOB}")
        free[3].append(f"s_mov_b32 m0, s{S_M0V + (ph+3)%4}")
        free[4].append(f"s_sub_u32 s{S_KT}, s{S_VOFF}, 0x10000")
        free[5].append(f"s_cmp_gt_i32 s{S_REM}, 2")
        free[6].append(f"s_cselect_b32 s{S_KUSE}, s{S_KT}, s{S_OOB}")
        free[8].append(f"s_sub_u32 s{S_VOFF}, s{S_VOFF}, 0x8000")
        free[10].append(f"s_sub_u32 s{S_REM}, s{S_REM}, 1")
        free[14].append(f"s_mov_b32 m0, s{S_M0K + (ph+5)%4}")
        free[30].append(f"s_cmp_ge_i32 s{S_REM}, -1")
        for gp in range(32):
            if gp < 8: b.e(mfma_q(0, gp, "0"))
            elif gp < 16: b.e(mfma_v(0, gp - 8))
            elif gp < 24: b.e(mfma_q(1, gp - 16, "0"))
            else: b.e(mfma_v(1, gp - 24))
            for t in free[gp]: b.e(t)
            for it in place[gp]:
                if it[0] == 'K': b.e(kread(it[1], (ph + 2) % 4 if gp >= 16 else (ph + 1) % 4))
                elif it[0] == 'V': b.e(vread(it[1], it[2], (ph + 1) % 4 if gp >= 16 else ph % 4))
                elif it[0] == 'KD': b.e(dma_k(it[1]))
                elif it[0] == 'VD': b.e(dma_v(it[1]))
            ops = self.sm_ops(gp, ph)
            if gp == 15:
                b.e(f"v_cmp_nge_f32 vcc, s{S_THR}, v{L+2*1+ph%2}")
            if gp == 31:
                b.e(f"v_cmp_nge_f32 vcc, s{S_THR}, v{L+2*0+(ph+1)%2}")
            for tag, t in ops: b.e(t)
            if gp == 15: self.check_site(b, 1, ph % 2)
            if gp == 31: self.check_site(b, 0, (ph + 1) % 2)
        b.e(f"s_cbranch_scc0 L_tail_{shape}_{(ph+1)%4}")
        if ph == 3: b.e(f"s_branch L_loop_{shape}_0")
        self.place = place
        return b

    def dma_scalar_v(self, b, ph):
        b.e(f"""s_cmp_gt_i32 s{S_REM}, 0
                s_cselect_b32 s{S_VUSE}, s{S_VOFF}, s{S_OOB}
                s_mov_b32 m0, s{S_M0V + (ph+3)%4}
                s_sub_u32 s{S_KT}, s{S_VOFF}, 0x10000
                s_cmp_gt_i32 s{S_REM}, 2
                s_cselect_b32 s{S_KUSE}, s{S_KT}, s{S_OOB}
                s_sub_u32 s{S_VOFF}, s{S_VOFF}, 0x8000
                s_sub_u32 s{S_REM}, s{S_REM}, 1""")

    def idle_step(self, shape):
        g = 2 if shape == 'A' else 4
        ph = 3
        b = Block(f"idle_{shape}")
        b.e(f"L_idle_{shape}:")
        self.dma_scalar_v(b, ph)
        for i in range(g): b.e(dma_v(i))
        b.e(f"s_waitcnt vmcnt({4*g})")
        b.e("s_barrier")
        b.e(f"s_mov_b32 m0, s{S_M0K + (ph+5)%4}")
        b.e("s_nop 0")
        for i in range(g): b.e(dma_k(i))
        return b

    def head(self, shape, f):
        g = 2 if shape == 'A' else 4
        ph = (f - 1) % 4
        b = Block(f"head_{shape}_{f}")
        b.e(f"L_head_{shape}_{f}:")
        for s in range(8): b.e(kread(s, f % 4))
        self.dma_scalar_v(b, ph)
        for i in range(g): b.e(dma_v(i))
        b.e(f"v_mov_b32 v{L+0+((f-1)%2)}, 0")
        b.e(f"v_mov_b32 v{L+2+((f-1)%2)}, 0")
        zero = [f"v_mov_b32 v{O+i}, 0" for i in range(128)]
        b.e("s_waitcnt lgkmcnt(0)")
        zi = 0
        for s in range(8):
            for x in range(2):
                b.e(mfma_q(x, s, vr(MJ, 16)))
                for _ in range(6):
                    b.e(zero[zi]); zi += 1
        b.e(f"s_waitcnt vmcnt({4*g})")
        b.e("s_barrier")
        b.e(f"s_mov_b32 m0, s{S_M0K + (ph+5)%4}")
        for s in range(8): b.e(kread(s, (f + 1) % 4))
        for i in range(g): b.e(dma_k(i))
        while zi < 128:
            b.e(zero[zi]); zi += 1
        for j in range(8):
            for e in range(2): b.e(vread(j, e, f % 4))
        for x in range(2):
            s0 = S + 16*x
            t = 2 + 2*x
            b.e(f"v_max3_f32 v{t}, v{s0}, v{s0+1}, v{s0+2}")
            for i in range(3, 15, 2):
                b.e(f"v_max3_f32 v{t}, v{t}, v{s0+i}, v{s0+i+1}")
            b.e(f"v_max_f32 v{t}, v{t}, v{s0+15}")
            b.e(f"v_mov_b32 v{t+1}, v{t}")
        b.e("s_nop 1")
        for x in range(2):
            t = 2 + 2*x
            b.e(f"v_permlane32_swap_b32 v{t}, v{t+1}")
        for x in range(2):
            t = 2 + 2*x
            b.e(f"v_max_f32 v{t}, v{t}, v{t+1}")
        for x in range(2):
            t = 2 + 2*x
            b.e(f"v_mul_f32 v{MC+x}, s{S_C}, v{t}")
        for gp in range(13, 32):
            for tag, t in self.sm_ops(gp, ph):
                if tag in ('a1', 'b1'): b.e(t)
            b.e("s_nop 0")
        b.e("s_waitcnt lgkmcnt(0)")
        b.e(f"s_cmp_ge_i32 s{S_REM}, -1")
        b.e(f"s_cbranch_scc0 L_tail_{shape}_{f%4}")
        b.e(f"s_branch L_loop_{shape}_{f%4}")
        return b

    def tail(self, shape, ph):
        g = 2 if shape == 'A' else 4
        b = Block(f"tail_{shape}_{ph}")
        b.e(f"L_tail_{shape}_{ph}:")
        place = self.plan_mem(g)
        for gp in range(16):
            for it in place[gp]:
                if it[0] == 'V': b.e(vread(it[1], it[2], ph % 4))
        valu = []
        for gp in range(0, 15):
            for tag, t in self.sm_ops(gp, ph):
                if tag == 'b0': valu.append(t)
            valu.append(None)
        groups = []
        cur = []
        for t in valu:
            if t is None: groups.append(cur); cur = []
            else: cur.append(t)
        gi = 0
        for _ in range(3):
            for t in groups[gi]: b.e(t)
            b.e("s_nop 0"); gi += 1
        b.e("s_waitcnt lgkmcnt(0)")
        for j in range(8):
            b.e(mfma_v(0, j))
            n = 2 if j % 2 == 0 else 1
            for _ in range(n):
                if gi < len(groups):
                    for t in groups[gi]: b.e(t)
                    b.e("s_nop 0"); gi += 1
        while gi < len(groups):
            for t in groups[gi]: b.e(t)
            b.e("s_nop 0"); gi += 1
        b.e(f"v_cmp_nge_f32 vcc, s{S_THR}, v{L+2*1+ph%2}")
        b.e("s_nop 1")
        self.check_site(b, 1, ph % 2)
        for j in range(8):
            b.e(mfma_v(1, j))
        b.e(f"v_mov_b32 v2, v{L+0+ph%2}")
        b.e(f"v_mov_b32 v3, v{L+0+ph%2}")
        b.e(f"v_mov_b32 v4, v{L+2+ph%2}")
        b.e(f"v_mov_b32 v5, v{L+2+ph%2}")
        b.e(f"s_branch L_epi_{shape}")
        return b

    def store_sub(self, b, x, scale_ops):
        k = 0
        for db in range(4):
            for j in range(2):
                X = S + 4 * (k % 8); k += 1
                tmp = P
                tb = P + 8 * (k % 2)
                for q in range(8):
                    idx = 16*db + 8*j + q
                    for t in scale_ops(idx, tb + q): b.e(t)
                for q in range(4):
                    b.e(f"v_cvt_pk_bf16_f32 v{X+q}, v{tb+2*q}, v{tb+2*q+1}")
                b.e("s_nop 1")
                b.e(f"v_permlane32_swap_b32 v{X}, v{X+2}")
                b.e(f"v_permlane32_swap_b32 v{X+1}, v{X+3}")
                b.e(f"buffer_store_dwordx4 {vr(X,4)}, v{OVOFF}, {sr(SRD_O,4)}, s{S_QOFF} offen offset:{x*256 + db*64 + j*32}")

    def epilogue(self, shape):
        b = Block(f"epi_{shape}")
        b.e(f"L_epi_{shape}:")
        b.e("s_nop 1")
        b.e("v_permlane32_swap_b32 v2, v3")
        b.e("v_permlane32_swap_b32 v4, v5")
        b.e("v_add_f32 v2, v2, v3")
        b.e("v_add_f32 v4, v4, v5")
        if shape == 'A':
            b.e("v_rcp_f32 v2, v2")
            b.e("v_rcp_f32 v4, v4")
            b.e("s_nop 7")
            b.e("s_waitcnt vmcnt(0)")
            b.e("s_barrier")
            for x in range(2):
                self.store_sub(b, x, lambda i, d, x=x: [f"v_mul_f32 v{d}, v{2+2*x}, v{O+64*x+i}"])
            b.e("s_branch L_job")
        else:
            b.e("s_nop 7")
            b.e("s_waitcnt vmcnt(0)")
            b.e("s_barrier")
            b.e(f"""s_lshl_b32 s{S_T0}, s{S_PAIR}, 16
                    s_lshl_b32 s{S_T0+1}, s{S_HP}, 14
                    s_add_u32 s{S_T0}, s{S_T0}, s{S_T0+1}
                    s_add_u32 s{S_T0}, s{S_T0}, 0x8000
                    s_xor_b32 s{S_T0+1}, s{S_T0}, 0x10000
                    v_lshlrev_b32 v6, 4, v{V_LANE}
                    v_add_u32 v7, s{S_T0+1}, v6
                    v_add_u32 v6, s{S_T0}, v6
                    s_lshl_b32 s{S_T0}, s{S_W}, 9
                    s_add_u32 s{S_T0}, s{S_T0}, 0x20000
                    s_xor_b32 s{S_T0+1}, s{S_T0}, 0x400
                    v_lshlrev_b32 v8, 3, v{V_LANE}
                    v_add_u32 v9, s{S_T0+1}, v8
                    v_add_u32 v8, s{S_T0}, v8
                    s_cmp_eq_u32 s{S_PAIR}, 0
                    s_cbranch_scc0 L_epiB_1""")
            for own in range(2):
                oth = own ^ 1
                if own == 1: b.e("L_epiB_1:")
                for i in range(16):
                    b.e(f"ds_write_b128 v6, {vr(O+64*oth+4*i,4)} offset:{i*1024}")
                b.e(f"v_mov_b32 v10, v{MC+oth}")
                b.e(f"v_mov_b32 v11, v{2+2*oth}")
                b.e("ds_write_b64 v8, v[10:11]")
                b.e("s_waitcnt lgkmcnt(0)")
                b.e("s_barrier")
                b.e("ds_read_b64 v[10:11], v9")
                for i in range(16):
                    b.e(f"ds_read_b128 {vr(O+64*oth+4*i,4)}, v7 offset:{i*1024}")
                b.e("s_waitcnt lgkmcnt(0)")
                b.e("s_barrier")
                lo = 2 + 2*own
                b.e(f"""v_max_f32 v12, v{MC+own}, v10
                        v_sub_f32 v13, v10, v12
                        v_sub_f32 v12, v{MC+own}, v12
                        v_exp_f32 v13, v13
                        v_exp_f32 v12, v12
                        s_nop 0
                        v_mul_f32 v11, v11, v13
                        v_fma_f32 v11, v{lo}, v12, v11
                        v_rcp_f32 v11, v11
                        s_nop 0
                        v_mul_f32 v12, v12, v11
                        v_mul_f32 v13, v13, v11""")
                self.store_sub(b, own, lambda i, d, own=own, oth=oth: [f"v_mul_f32 v{d}, v12, v{O+64*own+i}", f"v_fma_f32 v{d}, v13, v{O+64*oth+i}, v{d}"])
                b.e("s_branch L_job")
        return b

    def rare(self, x, par):
        b = Block(f"rare_{x}_{par}")
        b.e(f"L_rare_{x}_{par}:")
        s0 = S + 16*x
        b.e("s_nop 15")
        b.e(f"v_max3_f32 v2, v{s0}, v{s0+1}, v{s0+2}")
        for i in range(3, 15, 2):
            b.e(f"v_max3_f32 v2, v2, v{s0+i}, v{s0+i+1}")
        b.e(f"v_max_f32 v2, v2, v{s0+15}")
        b.e("v_mov_b32 v3, v2")
        b.e("s_nop 1")
        b.e("v_permlane32_swap_b32 v2, v3")
        b.e("v_max_f32 v2, v2, v3")
        b.e(f"v_mul_f32 v2, s{S_C}, v2")
        b.e(f"v_max_f32 v2, v2, v{MC+x}")
        b.e(f"v_sub_f32 v3, v{MC+x}, v2")
        b.e("v_exp_f32 v3, v3")
        b.e(f"v_mov_b32 v{MC+x}, v2")
        b.e(f"v_mul_f32 v{L+2*x+par}, v3, v{L+2*x+(par^1)}")
        for i in range(64):
            b.e(f"v_mul_f32 v{O+64*x+i}, v3, v{O+64*x+i}")
        for k in range(8):
            b.e(f"v_fma_f32 v4, v{s0+2*k}, s{S_C}, -v{MC+x}")
            b.e(f"v_fma_f32 v5, v{s0+2*k+1}, s{S_C}, -v{MC+x}")
            b.e("v_exp_f32 v4, v4")
            b.e("v_exp_f32 v5, v5")
            b.e("s_nop 0")
            b.e(f"v_add_f32 v{L+2*x+par}, v{L+2*x+par}, v4")
            b.e(f"v_add_f32 v{L+2*x+par}, v{L+2*x+par}, v5")
            b.e(f"v_cvt_pk_bf16_f32 v{P+8*x+k}, v4, v5")
        b.e("s_nop 1")
        b.e(f"s_setpc_b64 {sr(S_RET,2)}")
        return b

    def prologue(self):
        b = Block("prologue")
        b.e(f"""s_cmp_ge_u32 s2, 256
                s_cbranch_scc1 L_end
                s_load_dwordx4 s[52:55], s[0:1], 0
                s_load_dwordx2 s[56:57], s[0:1], 16
                s_load_dwordx2 s[58:59], s[0:1], 32
                s_getpc_b64 {sr(S_TAB,2)}""")
        b.e("L_pc:")
        b.e(f"""s_add_u32 s{S_TAB}, s{S_TAB}, jobtab-L_pc
                s_addc_u32 s{S_TAB+1}, s{S_TAB+1}, 0
                v_lshrrev_b32 v1, 6, v0
                v_and_b32 v{V_LANE}, 63, v0
                v_readfirstlane_b32 s{S_W}, v1
                s_nop 3
                s_lshr_b32 s{S_PAIR}, s{S_W}, 1
                s_and_b32 s{S_HP}, s{S_W}, 1
                s_lshl_b32 s3, s2, 7
                s_lshl_b32 s4, s{S_PAIR}, 4
                s_add_u32 s3, s3, s4
                s_add_u32 s{S_TAB}, s{S_TAB}, s3
                s_addc_u32 s{S_TAB+1}, s{S_TAB+1}, 0
                s_mov_b32 s{S_C}, {C_SCALE:#x}
                s_mov_b32 s{S_THR}, {THR:#x}
                s_mov_b32 s{S_OOB}, 0x80000000
                v_mov_b32 v{V_M16}, 0xffff
                v_and_b32 v1, 31, v{V_LANE}
                v_lshrrev_b32 v2, 5, v{V_LANE}
                v_lshlrev_b32 v3, 2, v2
                v_sub_u32 v3, v3, v1
                v_mov_b32 v4, {NEGBIG:#x}""")
        for r in range(16):
            kk = 8*(r//4) + r % 4
            b.e(f"v_cmp_lt_i32 vcc, {-kk}, v3")
            b.e("s_nop 1")
            b.e(f"v_cndmask_b32 v{MASK+r}, 0, v4, vcc")
        b.e("""v_and_b32 v5, 15, v1
               v_xor_b32 v5, v5, v2
               v_lshlrev_b32 v5, 4, v5
               v_lshl_add_u32 v5, v1, 8, v5""")
        for s in range(8):
            b.e(f"v_xor_b32 v{KADDR+s}, {32*s}, v5")
        b.e(f"""v_bfe_u32 v5, v{V_LANE}, 2, 2
                v_lshl_add_u32 v6, v2, 2, v5
                v_lshlrev_b32 v6, 8, v6
                v_lshl_add_u32 v6, v5, 6, v6
                v_bfe_u32 v7, v{V_LANE}, 4, 1
                v_lshl_add_u32 v6, v7, 5, v6
                v_and_b32 v7, 3, v{V_LANE}
                v_lshl_add_u32 v6, v7, 3, v6""")
        for db in range(4):
            b.e(f"v_xor_b32 v{VADDR+db}, {64*db}, v6")
        b.e(f"""v_lshlrev_b32 v5, 12, v1
                v_lshl_add_u32 v{QVOFF}, v2, 4, v5""")
        b.e(f"""v_lshrrev_b32 v5, 4, v{V_LANE}
                v_and_b32 v6, 15, v{V_LANE}
                v_xor_b32 v7, v6, v5
                v_lshlrev_b32 v7, 4, v7
                v_lshl_add_u32 v1, v5, 10, v7
                v_lshlrev_b32 v7, 2, v5
                v_xor_b32 v7, v6, v7
                v_lshlrev_b32 v7, 4, v7
                v_lshl_add_u32 v0, v5, 10, v7
                s_waitcnt lgkmcnt(0)
                s_mov_b32 s{SRD_Q}, s52
                s_mov_b32 s{SRD_Q+1}, s53
                s_mov_b32 s{SRD_Q+2}, {QBYTES}
                s_mov_b32 s{SRD_Q+3}, 0x00020000
                s_mov_b32 s{SRD_K}, s54
                s_mov_b32 s{SRD_K+1}, s55
                s_mov_b32 s{SRD_K+2}, {KBYTES}
                s_mov_b32 s{SRD_K+3}, 0x00020000
                s_mov_b32 s{SRD_V}, s56
                s_mov_b32 s{SRD_V+1}, s57
                s_mov_b32 s{SRD_V+2}, {KBYTES}
                s_mov_b32 s{SRD_V+3}, 0x00020000
                s_mov_b32 s{SRD_O}, s58
                s_mov_b32 s{SRD_O+1}, s59
                s_mov_b32 s{SRD_O+2}, {QBYTES}
                s_mov_b32 s{SRD_O+3}, 0x00020000""")
        return b

    def jobstart(self):
        b = Block("jobstart")
        J = S_J
        b.e("L_job:")
        b.e(f"""s_load_dwordx4 {sr(J,4)}, {sr(S_TAB,2)}, 0
                s_add_u32 s{S_TAB}, s{S_TAB}, 32
                s_addc_u32 s{S_TAB+1}, s{S_TAB+1}, 0
                s_waitcnt lgkmcnt(0)
                s_bitcmp1_b32 s{J+3}, 11
                s_cbranch_scc0 L_end
                s_lshl_b32 s{S_T0}, s{S_HP}, 9
                s_add_u32 s{S_QOFF}, s{J}, s{S_T0}""")
        for x in range(2):
            for s in range(8):
                b.e(f"buffer_load_dwordx4 {ar(AQ+32*x+4*s,4)}, v{QVOFF}, {sr(SRD_Q,4)}, s{S_QOFF} offen offset:{x*256+s*32}")
        b.e(f"""s_bitcmp1_b32 s{J+3}, 10
                s_cselect_b32 s{S_T0}, s{S_HP}, s{S_W}
                s_cselect_b32 s{S_T0+1}, 2, 1
                s_lshl_b32 s{S_G0}, s{S_T0}, s{S_T0+1}
                s_bitcmp1_b32 s{J+3}, 10
                s_cselect_b32 s{S_RING}, s{S_PAIR}, 0
                s_lshl_b32 s{S_RING}, s{S_RING}, 16
                s_lshl_b32 s{S_T0}, s{S_G0}, 10
                s_add_u32 s{S_T0}, s{S_T0}, s{S_RING}""")
        for i in range(4):
            b.e(f"s_add_u32 s{S_M0K+i}, s{S_T0}, {i*8192}")
            b.e(f"s_add_u32 s{S_M0V+i}, s{S_T0}, {32768+i*8192}")
        for i in range(4):
            b.e(f"""s_add_u32 s{S_T0}, s{S_G0}, {i}
                    s_and_b32 s{S_T0+1}, s{S_T0}, 3
                    s_lshl_b32 s{S_T0+1}, s{S_T0+1}, 6
                    s_lshl_b32 s{S_T0}, s{S_T0}, 12
                    s_sub_u32 s{S_T0}, s{S_T0}, {i*1024}
                    v_xor_b32 v{DK+i}, s{S_T0+1}, v1
                    v_add_u32 v{DK+i}, s{S_T0}, v{DK+i}
                    v_add_u32 v{DV+i}, s{S_T0}, v0""")
        for i in range(8):
            b.e(f"v_and_or_b32 v{KADDR+i}, v{KADDR+i}, v{V_M16}, s{S_RING}")
        for i in range(4):
            b.e(f"v_and_or_b32 v{VADDR+i}, v{VADDR+i}, v{V_M16}, s{S_RING}")
        b.e(f"""s_bitcmp1_b32 s{J+3}, 8
                s_cselect_b32 s{S_T0}, -1, 0""")
        for r in range(16):
            b.e(f"v_and_b32 v{MJ+r}, s{S_T0}, v{MASK+r}")
        b.e(f"""s_and_b32 s{S_T0}, s{J+3}, 63
                v_and_b32 v2, 31, v{V_LANE}
                v_cmp_gt_u32 vcc, s{S_T0}, v2
                v_mov_b32 v3, s{S_OOB}
                s_nop 1
                v_cndmask_b32 v{OVOFF}, v3, v{QVOFF}, vcc
                s_sub_u32 s{S_REM}, s{J+2}, 2
                s_sub_u32 s{S_VOFF}, s{J+1}, 0x10000
                s_bitcmp1_b32 s{J+3}, 10
                s_cbranch_scc1 L_pre_B""")
        return b

    def pre(self, shape):
        g = 2 if shape == 'A' else 4
        J = S_J
        b = Block(f"pre_{shape}")
        b.e(f"L_pre_{shape}:")
        for kind, u in (('K', 0), ('K', 1), ('V', 0), ('K', 2), ('V', 1), ('K', 3)):
            b.e(f"""s_sub_u32 s{S_T0}, s{J+1}, {u*0x8000}
                    s_cmp_gt_i32 s{J+2}, {u}
                    s_cselect_b32 s{S_T0}, s{S_T0}, s{S_OOB}
                    s_mov_b32 m0, s{(S_M0K if kind == 'K' else S_M0V) + u}
                    s_nop 0""")
            for i in range(g):
                b.e(dma_k(i, S_T0) if kind == 'K' else dma_v(i, S_T0))
        b.e(f"s_waitcnt vmcnt({5*g})")
        b.e("s_barrier")
        b.e(f"s_bitcmp1_b32 s{J+3}, 9")
        b.e(f"s_cbranch_scc0 L_head_{shape}_0")
        return b

    def build(self, wg):
        self.add(self.prologue())
        self.add(self.jobstart())
        for shape in 'AB':
            self.add(self.pre(shape))
            self.add(self.idle_step(shape))
            self.add(self.head(shape, 1))
            self.add(self.head(shape, 0))
            al = Block(f"align_{shape}"); al.e(".p2align 6"); self.add(al)
            for ph in range(4): self.add(self.step(shape, ph))
            for ph in range(4): self.add(self.tail(shape, ph))
            self.add(self.epilogue(shape))
        for x in range(2):
            for par in range(2): self.add(self.rare(x, par))
        self.add(self.stubs)
        end = Block("end"); end.e("L_end:"); end.e("s_endpgm"); self.add(end)
        B = self.blocks
        paths = []
        for sh in 'AB':
            lp = [f"loop_{sh}_{p}" for p in range(4)]
            paths.append(["prologue", "jobstart", f"pre_{sh}", f"head_{sh}_0"] + lp + lp)
            paths.append([f"pre_{sh}", f"idle_{sh}", f"head_{sh}_1"] + lp[1:] + lp)
            for ph in range(4):
                paths.append([lp[(ph-2) % 4], lp[(ph-1) % 4], f"tail_{sh}_{ph}", f"epi_{sh}", "jobstart"])
            paths.append([f"head_{sh}_0", f"tail_{sh}_0", f"epi_{sh}"])
            paths.append([f"head_{sh}_1", f"tail_{sh}_1", f"epi_{sh}"])
        for x in range(2):
            for par in range(2): paths.append([f"rare_{x}_{par}", "loop_A_0"])
        nprob = 0
        for p in paths:
            seq = sum((B[n].ins for n in p), [])
            for pr in check_hazards(seq, "+".join(p)):
                print("HAZARD", pr, file=sys.stderr); nprob += 1
        assert nprob == 0
        txt = ""
        for n in self.order: txt += B[n].text()
        return txt

def table(wg):
    CU = sched.CU
    words = []
    for w in range(256):
        ent = []
        for (seq, kvh, kind, b, N) in wg[w]:
            s0, Ls = CU[seq], CU[seq+1] - CU[seq]
            def q(bb): return ((s0 + 32*bb) * 16 + kvh * 4) * 256
            def kv(t): return ((s0 + 32*t) * 4 + kvh) * 256
            def nv(bb): return max(0, min(32, Ls - 32*bb))
            if kind == 'A':
                ent += [q(b), kv(b+1), N, nv(b) | 1 << 8 | 1 << 9 | 1 << 11]
                ent += [q(b+1), kv(b+1), N, nv(b+1) | 1 << 8 | 1 << 11]
            else:
                n = b + 1
                assert n >= 2 and N == (n + 1) // 2
                n0 = n - N
                d = N - n0
                ent += [q(b), kv(b), N, nv(b) | 1 << 8 | 1 << 10 | 1 << 11]
                ent += [q(b), kv(n0 - 1 + d), N, nv(b) | d << 9 | 1 << 10 | 1 << 11]
        assert len(ent) <= 24
        ent += [0] * (32 - len(ent))
        words += ent
    return words

def main(out, thr=32, ovh=2.5):
    wg, st = sched.build(thr, ovh)
    g = Gen()
    body = g.build(wg)
    hdr = open(f"cdna_kernels/{NAME}.s.ref").read().split("; Override launch")[0]
    s = hdr
    s += f"; @launch grid=(256,1,1) block=(256,1,1) lds={LDS_BYTES}\n"
    s += f""".amdgcn_target "amdgcn-amd-amdhsa--gfx950"
.text
.globl {NAME}_kernel
.p2align 8
.type {NAME}_kernel,@function
{NAME}_kernel:
"""
    s += body
    s += ".p2align 6\n.type jobtab,@object\njobtab:\n"
    w = table(wg)
    for i in range(0, len(w), 8):
        s += ".long " + ", ".join(f"{x:#x}" for x in w[i:i+8]) + "\n"
    s += f".size jobtab, {len(w)*4}\n"
    s += f""".section .rodata,"a"
.p2align 6
.amdhsa_kernel {NAME}_kernel
  .amdhsa_next_free_vgpr 384
  .amdhsa_next_free_sgpr 102
  .amdhsa_accum_offset 256
  .amdhsa_group_segment_fixed_size 0
  .amdhsa_kernarg_size 56
  .amdhsa_user_sgpr_count 2
  .amdhsa_user_sgpr_kernarg_segment_ptr 1
  .amdhsa_system_sgpr_workgroup_id_x 1
.end_amdhsa_kernel
"""
    open(out, "w").write(s)

if __name__ == "__main__":
    main(sys.argv[1] if len(sys.argv) > 1 else f"cdna_kernels/{NAME}.s")
```

```python
import sys, struct, math
from asmlib import *
import sched

NAME = "standalone__ragged_sequences_varlen_flash_attn__ragged"
T_TOK = 7180
QBYTES = T_TOK * 16 * 256
KBYTES = T_TOK * 4 * 256
def f32(x): return struct.unpack('<I', struct.pack('<f', x))[0]
C_SCALE = f32(math.log2(math.e) / math.sqrt(128.0))
THR = f32(2.0 ** 40)
NEGBIG = f32(-1.0e30)
LDS_BYTES = 163840

V_DVB = 0; V_DKB = 1
DQ = 8
QRA = 9
V_M16 = 14; V_LANE = 15
MASK = 16; MJ = 32
DK = 48; DV = 52
VADDR = 56; KADDR = 60
MC = 68
L = 70
TT = 74
P = 80
S = 96
O = 128
AQ = 0; AK = 64; AV = 96
OV = MJ; STW = MJ + 4; STR = MJ + 5; XW = MJ + 6; XR = MJ + 7; E0 = MJ + 8
SRD_Q, SRD_K, SRD_V, SRD_O = 8, 12, 16, 20
S_C, S_THR, S_OOB, S_W, S_PAIR, S_HP = 24, 25, 26, 27, 28, 29
S_RET = 30
S_TAB = 32
S_J = 36
S_QOFF, S_VOFF, S_REM, S_KUSE, S_VUSE, S_KT = 40, 41, 42, 43, 44, 45
S_T0 = 50
S_M0K = 60
S_M0V = 64
S_RING = 68
S_G0 = 69
S_N = 72
S_TRASH = 76
S_QST = 77
S_STG = 78
S_QCNT, S_QSO, S_QM0, S_QUSE, S_QADJ = 46, 47, 48, 49, 70
S_FIRST = 71
S_QADJV = 79

def vr(b, n): return f"v[{b}:{b+n-1}]"
def ar(b, n): return f"a[{b}:{b+n-1}]"
def sr(b, n): return f"s[{b}:{b+n-1}]"

def mfma_q(x, s, first_c):
    c = first_c if s == 0 else vr(S + 16*x, 16)
    return f"v_mfma_f32_32x32x16_bf16 {vr(S+16*x,16)}, {ar(AK+4*s,4)}, {ar(AQ+32*x+4*s,4)}, {c}"
def mfma_v(x, j):
    u, db = j // 4, j % 4
    o = vr(O + 64*x + 16*db, 16)
    return f"v_mfma_f32_32x32x16_bf16 {o}, {ar(AV+4*j,4)}, {vr(P+8*x+4*u,4)}, {o}"
def kread(s, slot):
    return f"ds_read_b128 {ar(AK+4*s,4)}, v{KADDR+s} offset:{slot*8192}"
def vread(j, e, slot):
    u, db = j // 4, j % 4
    return f"ds_read_b64_tr_b16 {ar(AV+4*j+2*e,2)}, v{VADDR+db} offset:{32768 + slot*8192 + (16*u+8*e)*256}"
def dma_k(i, suse=S_KUSE):
    return f"buffer_load_dwordx4 v{DK+i}, {sr(SRD_K,4)}, s{suse} offen offset:{i*1024} lds"
def dma_v(i, suse=S_VUSE):
    return f"buffer_load_dwordx4 v{DV+i}, {sr(SRD_V,4)}, s{suse} offen offset:{i*1024} lds"

def dma_q():
    return f"buffer_load_dwordx4 v{DQ}, {sr(SRD_Q,4)}, s{S_QUSE} offen lds"
Q_PRE = [f"s_cmp_gt_i32 s{S_QCNT}, 0",
         f"s_cselect_b32 s{S_QUSE}, s{S_QSO}, s{S_OOB}",
         f"s_cselect_b32 m0, s{S_QM0}, s{S_TRASH}"]
Q_POST = [f"s_add_u32 s{S_QSO}, s{S_QSO}, 0x4000",
          f"s_add_u32 s{S_QM0}, s{S_QM0}, 0x400",
          f"s_sub_u32 s{S_QCNT}, s{S_QCNT}, 1",
          f"s_cmp_eq_u32 s{S_QCNT}, 8",
          f"s_cselect_b32 s{S_QADJ}, s{S_QADJV}, 0",
          f"s_add_u32 s{S_QSO}, s{S_QSO}, s{S_QADJ}"]
def opF(x, e): return f"v_fma_f32 v{TT+e%4}, v{S+16*x+e}, s{S_C}, -v{MC+x}"
def opE(x, e): return f"v_exp_f32 v{TT+e%4}, v{TT+e%4}"
def opA(x, e, par):
    src = L + 2*x + (par ^ 1) if e == 0 else L + 2*x + par
    return f"v_add_f32 v{L+2*x+par}, v{src}, v{TT+e%4}"
def opC(x, k): return f"v_cvt_pk_bf16_f32 v{P+8*x+k}, v{TT+(2*k)%4}, v{TT+(2*k+1)%4}"

STAMPS = False
def stamp(b, real=False):
    if not STAMPS: return
    b.e(f"""{'s_memrealtime' if real else 's_memtime'} s[80:81]
            s_waitcnt lgkmcnt(0)
            v_mov_b32 v12, s80
            v_mov_b32 v13, s82
            s_add_u32 s82, s82, 4
            buffer_store_dword v12, v13, s[84:87], 0 offen""")

class Gen:
    def __init__(self):
        self.blocks = {}
        self.order = []
        self.stubs = Block("stubs")
        self.nstub = 0
    def add(self, b):
        self.blocks[b.name] = b; self.order.append(b.name); return b

    def check_site(self, b, x, par):
        k = self.nstub; self.nstub += 1
        b.e(f"s_cbranch_vccnz L_stub{k}")
        b.e(f"L_ret{k}:")
        self.stubs.e(f"L_stub{k}:")
        self.stubs.e(f"s_call_b64 {sr(S_RET,2)}, L_rare_{x}_{par}")
        self.stubs.e(f"s_branch L_ret{k}")

    def plan_mem(self, g):
        cap = [1 if i % 2 == 0 else 2 for i in range(32)]
        cap[15] = 0; cap[31] = 0
        place = {i: [] for i in range(32)}
        kd = [17, 19, 21, 23] if g == 4 else [19, 23]
        vd = [7, 9, 11, 13] if g == 4 else [9, 13]
        for i, gp in enumerate(kd): place[gp].append(('KD', i)); cap[gp] -= 2
        for i, gp in enumerate(vd): place[gp].append(('VD', i)); cap[gp] -= 2
        place[27].append(('QD',)); cap[27] -= 2
        items = [(16 + s, 30, ('K', s)) for s in range(8)]
        for j in range(8):
            for e in range(2): items.append((24 + j, 38 if j < 4 else 42, ('V', j, e)))
        pend = list(items)
        for t in range(16, 48):
            gp = t % 32
            while cap[gp] > 0:
                c = [it for it in pend if it[0] <= t]
                if not c: break
                it = min(c, key=lambda i: (i[1], i[0]))
                assert it[1] >= t, ("deadline miss", it, t)
                pend.remove(it); cap[gp] -= 1
                place[gp].append(it[2])
        assert not pend
        for gp in place:
            place[gp].sort(key=lambda it: 0 if it[0] in ('K', 'V') else 1)
        return place

    def sm_ops(self, gap, ph):
        ops = []
        s_par = ph % 2
        def elem(idx):
            if 0 <= idx < 16: return (1, idx, s_par, 'b0')
            if 16 <= idx < 32: return (0, idx - 16, s_par ^ 1, 'a1')
            if 32 <= idx < 48: return (1, idx - 32, s_par ^ 1, 'b1')
            return None
        x, e, par, tag = elem(gap + 1); ops.append((tag, opA(x, e, par)))
        if gap % 2 == 0:
            x, e, par, tag = elem(gap); ops.append((tag, opC(x, e // 2)))
        x, e, par, tag = elem(gap + 3); ops.append((tag, opF(x, e)))
        x, e, par, tag = elem(gap + 2); ops.append((tag, opE(x, e)))
        return ops

    def step(self, shape, ph):
        g = 2 if shape == 'A' else 4
        b = Block(f"loop_{shape}_{ph}")
        b.e(f"L_loop_{shape}_{ph}:")
        place = self.plan_mem(g)
        free = {i: [] for i in range(32)}
        seq = []
        for gp in range(32):
            for it in place[gp]:
                if it[0] in ('K', 'V'): seq.append((gp, it))
        def count_after(need_items, wait_gap):
            lin = [(gp - 32, it) for gp, it in seq] + [(gp, it) for gp, it in seq]
            lin = [(t, it) for t, it in lin if t < wait_gap]
            last = max(max(i for i, (t, it) in enumerate(lin) if it == n) for n in need_items)
            return len(lin) - 1 - last
        wk = count_after([('K', s) for s in range(8)], 31)
        free[31].append(f"s_waitcnt lgkmcnt({wk})")
        wv0 = count_after([('V', j, e) for j in range(4) for e in range(2)], 7)
        free[7].append(f"s_waitcnt lgkmcnt({wv0})")
        wv1 = count_after([('V', j, e) for j in range(4, 8) for e in range(2)], 11)
        free[11].append(f"s_waitcnt lgkmcnt({wv1})")
        assert max(wk, wv0, wv1) <= 15
        free[15].append(f"s_waitcnt vmcnt({4*g+2})")
        free[16].append("s_barrier")
        free[20].append(Q_PRE[0]); free[22].append(Q_PRE[1]); free[24].append(Q_PRE[2])
        free[28].append(Q_POST[0]); free[29].append(Q_POST[1])
        free[5].append(Q_POST[2]); free[6].append(Q_POST[3]); free[8].append(Q_POST[4]); free[9].append(Q_POST[5])
        free[0].append(f"s_cmp_gt_i32 s{S_REM}, 0")
        free[1].append(f"s_cselect_b32 s{S_VUSE}, s{S_VOFF}, s{S_OOB}")
        free[2].append(f"s_cselect_b32 m0, s{S_M0V + (ph+3)%4}, s{S_TRASH}")
        free[3].append(f"s_sub_u32 s{S_KT}, s{S_VOFF}, 0x10000")
        free[4].append(f"s_sub_u32 s{S_VOFF}, s{S_VOFF}, 0x8000")
        free[10].append(f"s_cmp_gt_i32 s{S_REM}, 2")
        free[12].append(f"s_cselect_b32 s{S_KUSE}, s{S_KT}, s{S_OOB}")
        free[14].append(f"s_cselect_b32 m0, s{S_M0K + (ph+5)%4}, s{S_TRASH}")
        free[18].append(f"s_sub_u32 s{S_REM}, s{S_REM}, 1")
        free[30].append(f"s_cmp_ge_i32 s{S_REM}, -1")
        for gp in range(32):
            if gp < 8: b.e(mfma_q(0, gp, "0"))
            elif gp < 16: b.e(mfma_v(0, gp - 8))
            elif gp < 24: b.e(mfma_q(1, gp - 16, "0"))
            else: b.e(mfma_v(1, gp - 24))
            for t in free[gp]: b.e(t)
            for it in place[gp]:
                if it[0] == 'K': b.e(kread(it[1], (ph + 2) % 4 if gp >= 16 else (ph + 1) % 4))
                elif it[0] == 'V': b.e(vread(it[1], it[2], (ph + 1) % 4 if gp >= 16 else ph % 4))
                elif it[0] == 'KD': b.e(dma_k(it[1]))
                elif it[0] == 'VD': b.e(dma_v(it[1]))
                elif it[0] == 'QD': b.e(dma_q())
            ops = self.sm_ops(gp, ph)
            if gp == 15:
                b.e(f"v_cmp_nge_f32 vcc, s{S_THR}, v{L+2*1+ph%2}")
            if gp == 31:
                b.e(f"v_cmp_nge_f32 vcc, s{S_THR}, v{L+2*0+(ph+1)%2}")
            for tag, t in ops: b.e(t)
            if gp == 15: self.check_site(b, 1, ph % 2)
            if gp == 31: self.check_site(b, 0, (ph + 1) % 2)
        b.e(f"s_cbranch_scc0 L_tail_{shape}_{(ph+1)%4}")
        if ph == 3: b.e(f"s_branch L_loop_{shape}_0")
        return b

    def dma_v_part(self, b, ph, g):
        for t in Q_POST[2:]: b.e(t)
        b.e(f"""s_cmp_gt_i32 s{S_REM}, 0
                s_cselect_b32 s{S_VUSE}, s{S_VOFF}, s{S_OOB}
                s_cselect_b32 m0, s{S_M0V + (ph+3)%4}, s{S_TRASH}
                s_sub_u32 s{S_KT}, s{S_VOFF}, 0x10000
                s_sub_u32 s{S_VOFF}, s{S_VOFF}, 0x8000""")
        for i in range(g): b.e(dma_v(i))
    def dma_k_scalar(self, b, ph):
        b.e(f"""s_cmp_gt_i32 s{S_REM}, 2
                s_cselect_b32 s{S_KUSE}, s{S_KT}, s{S_OOB}
                s_cselect_b32 m0, s{S_M0K + (ph+5)%4}, s{S_TRASH}
                s_sub_u32 s{S_REM}, s{S_REM}, 1""")
    def dma_q_part(self, b):
        for t in Q_PRE: b.e(t)
        b.e(Q_POST[0])
        b.e(dma_q())
        b.e(Q_POST[1])

    def idle_step(self, shape):
        g = 2 if shape == 'A' else 4
        ph = 3
        b = Block(f"idle_{shape}")
        b.e(f"L_idle_{shape}:")
        self.dma_v_part(b, ph, g)
        b.e(f"s_waitcnt vmcnt({4*g})")
        b.e("s_barrier")
        self.dma_k_scalar(b, ph)
        for i in range(g): b.e(dma_k(i))
        self.dma_q_part(b)
        return b

    def qreads(self, b, x):
        for s in range(8):
            b.e(f"ds_read_b128 {ar(AQ+32*x+4*s,4)}, v{P+s} offset:{x*8192}")

    def head(self, shape, f):
        g = 2 if shape == 'A' else 4
        ph = (f - 1) % 4
        b = Block(f"head_{shape}_{f}")
        b.e(f"L_head_{shape}_{f}:")
        for s in range(8): b.e(kread(s, f % 4))
        self.dma_v_part(b, ph, g)
        b.e(f"v_mov_b32 v{L+0+((f-1)%2)}, 0")
        b.e(f"v_mov_b32 v{L+2+((f-1)%2)}, 0")
        zero = [f"v_mov_b32 v{O+i}, 0" for i in range(128)]
        b.e("s_waitcnt lgkmcnt(0)")
        zi = 0
        for x in range(2):
            if x == 1 and shape == 'A' and f == 0:
                b.e(f"""s_cmp_eq_u32 s{S_FIRST}, 0
                        s_cbranch_scc1 L_hq_skip
                        s_mov_b32 s{S_FIRST}, 0
                        s_waitcnt vmcnt({5*g+1+g})""")
                self.qreads(b, 1)
                b.e("s_waitcnt lgkmcnt(0)")
                b.e("L_hq_skip:")
            for s in range(8):
                b.e(mfma_q(x, s, vr(MJ, 16)))
                for _ in range(6):
                    b.e(zero[zi]); zi += 1
        b.e(f"s_waitcnt vmcnt({4*g if f == 0 else 4*g+1})")
        b.e("s_barrier")
        self.dma_k_scalar(b, ph)
        for s in range(8): b.e(kread(s, (f + 1) % 4))
        for i in range(g): b.e(dma_k(i))
        self.dma_q_part(b)
        for j in range(8):
            for e in range(2): b.e(vread(j, e, f % 4))
        while zi < 128:
            b.e(zero[zi]); zi += 1
        for x in range(2):
            s0 = S + 16*x
            t = 2 + 2*x
            b.e(f"v_max3_f32 v{t}, v{s0}, v{s0+1}, v{s0+2}")
            for i in range(3, 15, 2):
                b.e(f"v_max3_f32 v{t}, v{t}, v{s0+i}, v{s0+i+1}")
            b.e(f"v_max_f32 v{t}, v{t}, v{s0+15}")
            b.e(f"v_mov_b32 v{t+1}, v{t}")
        b.e("s_nop 1")
        for x in range(2):
            t = 2 + 2*x
            b.e(f"v_permlane32_swap_b32 v{t}, v{t+1}")
        for x in range(2):
            t = 2 + 2*x
            b.e(f"v_max_f32 v{t}, v{t}, v{t+1}")
        for x in range(2):
            t = 2 + 2*x
            b.e(f"v_mul_f32 v{MC+x}, s{S_C}, v{t}")
        for gp in range(13, 32):
            ops = [t for tag, t in self.sm_ops(gp, ph) if tag in ('a1', 'b1')]
            ex = [t for t in ops if t.startswith('v_exp')]
            ot = [t for t in ops if not t.startswith('v_exp')]
            if len(ot) == 0 or not ex:
                for t in ops: b.e(t)
                b.e("s_nop 0")
            else:
                b.e(ex[0])
                for t in ot: b.e(t)
        b.e("s_waitcnt lgkmcnt(0)")
        stamp(b)
        b.e(f"s_cmp_ge_i32 s{S_REM}, -1")
        b.e(f"s_cbranch_scc0 L_tail_{shape}_{f%4}")
        b.e(f"s_branch L_loop_{shape}_{f%4}")
        return b

    def pf_group(self, kind, u):
        N = S_N
        k = self.nstub; self.nstub += 1
        m0r = (S_M0K if kind == 'K' else S_M0V) + u
        d = dma_k if kind == 'K' else dma_v
        g0 = [f"s_sub_u32 s{S_T0+4}, s{N+1}, {u*0x8000}",
              f"s_cmp_gt_i32 s{N+2}, {u}",
              f"s_cselect_b32 s{S_T0+4}, s{S_T0+4}, s{S_OOB}",
              f"s_cselect_b32 m0, s{m0r}, s{S_TRASH}",
              f"s_nop 0",
              d(0, S_T0+4)]
        g1 = [d(1, S_T0+4)]
        g2 = [f"s_bitcmp1_b32 s{N+3}, 10", f"s_cbranch_scc0 L_pfs{k}", d(2, S_T0+4), d(3, S_T0+4), f"L_pfs{k}:"]
        return [g0, g1, g2]

    def tail(self, shape, ph):
        g = 2 if shape == 'A' else 4
        b = Block(f"tail_{shape}_{ph}")
        b.e(f"L_tail_{shape}_{ph}:")
        stamp(b)
        place = self.plan_mem(g)
        for gp in range(16):
            for it in place[gp]:
                if it[0] == 'V': b.e(vread(it[1], it[2], ph % 4))
        b.e(f"s_call_b64 {sr(S_RET,2)}, L_pfsetup")
        pf = self.pf_group('K', 0) + self.pf_group('K', 1)
        groups = []
        for gp in range(0, 15):
            ops = [t for tag, t in self.sm_ops(gp, ph) if tag == 'b0']
            ex = [t for t in ops if t.startswith('v_exp')]
            ot = [t for t in ops if not t.startswith('v_exp')]
            groups.append(ex + ot if ex else ["s_nop 0"] + ot)
        gi = 0
        b.e("s_waitcnt lgkmcnt(0)")
        for j in range(8):
            b.e(mfma_v(0, j))
            if j in (1, 3, 5):
                for t in pf[(j - 1) // 2]: b.e(t)
            n = 2 if j % 2 == 0 else 1
            for _ in range(n):
                if gi < len(groups):
                    for t in groups[gi]: b.e(t)
                    gi += 1
        while gi < len(groups):
            for t in groups[gi]: b.e(t)
            gi += 1
        b.e(f"v_cmp_nge_f32 vcc, s{S_THR}, v{L+2*1+ph%2}")
        b.e("s_nop 1")
        self.check_site(b, 1, ph % 2)
        ec = Block(); self.epi_common(ec)
        ecl = [i.text for i in ec.ins]
        ei = 0
        for j in range(8):
            b.e(mfma_v(1, j))
            if j in (1, 3, 5):
                for t in pf[3 + (j - 1) // 2]: b.e(t)
            if j == 0:
                b.e(f"v_mov_b32 v2, v{L+0+ph%2}")
                b.e(f"v_mov_b32 v3, v{L+0+ph%2}")
                b.e(f"v_mov_b32 v4, v{L+2+ph%2}")
                b.e(f"v_mov_b32 v5, v{L+2+ph%2}")
            else:
                for _ in range(5):
                    if ei < len(ecl): b.e(ecl[ei]); ei += 1
        while ei < len(ecl): b.e(ecl[ei]); ei += 1
        b.e(f"s_branch L_epi_{shape}")
        return b

    def store_chunks(self, b, subs, scale_ops, extra):
        k = 0
        pend = []
        extra = list(extra)
        R0 = [S + 16, MJ + 8 - 8]
        chunks = [(x, dh) for x in subs for dh in range(2)]
        for ci, (x, dh) in enumerate(chunks):
            R = S + 16
            n = 0
            for dbl in range(2):
                db = 2*dh + dbl
                for gq in range(4):
                    tb = P + 4 * (k % 4); X = S + 2 * (k % 8); k += 1
                    for q in range(4):
                        for t in scale_ops(x, 16*db + 4*gq + q, tb + q): b.e(t)
                    b.e(f"v_cvt_pk_bf16_f32 v{X}, v{tb}, v{tb+1}")
                    b.e(f"v_cvt_pk_bf16_f32 v{X+1}, v{tb+2}, v{tb+3}")
                    if pend and n % 2 == 0:
                        for t in pend.pop(0): b.e(t)
                    elif extra and n % 2 == 1:
                        for t in extra.pop(0): b.e(t)
                    n += 1
                    self._wr = getattr(self, '_wr', 0)
                    b.e(f"ds_write_b64 v{STW}, {vr(X,2)} offset:{(4*dbl+gq)*16 + (ci%2)*4608 if False else (4*dbl+gq)*16}")
            assert not pend
            for kk in range(4):
                b.e(f"ds_read_b128 {vr(R+4*kk,4)}, v{STR} offset:{kk*8*144}")
            for kk in range(4):
                nw = 2*kk if ci + 1 < len(chunks) else 0
                pend.append([f"s_waitcnt lgkmcnt({min(15, 3-kk+nw)})",
                             f"buffer_store_dwordx4 {vr(R+4*kk,4)}, v{OV+kk}, {sr(SRD_O,4)}, s{S_QOFF} offen offset:{x*256 + dh*128}"])
        while extra:
            for t in extra.pop(0): b.e(t)
        while pend:
            for t in pend.pop(0): b.e(t)

    def epi_common(self, b):
        J = S_J
        b.e(f"""s_and_b32 s{S_T0}, s{J+3}, 63
                v_and_b32 v6, 31, v{V_LANE}
                v_lshrrev_b32 v7, 5, v{V_LANE}
                v_mul_u32_u24 v{STW}, 144, v6
                v_lshl_add_u32 v{STW}, v7, 3, v{STW}
                v_add_u32 v{STW}, s{S_STG}, v{STW}
                v_lshrrev_b32 v6, 3, v{V_LANE}
                v_and_b32 v7, 7, v{V_LANE}
                v_mul_u32_u24 v{STR}, 144, v6
                v_lshl_add_u32 v{STR}, v7, 4, v{STR}
                v_add_u32 v{STR}, s{S_STG}, v{STR}
                v_lshlrev_b32 v7, 4, v7
                v_lshl_add_u32 v7, v6, 12, v7
                v_mov_b32 v13, s{S_OOB}""")
        for kk in range(4):
            b.e(f"""v_add_u32 v12, {8*kk}, v6
                    v_cmp_gt_u32 vcc, s{S_T0}, v12
                    v_add_u32 v12, {kk*32768}, v7
                    s_nop 0
                    v_cndmask_b32 v{OV+kk}, v13, v12, vcc""")
        b.e("v_permlane32_swap_b32 v2, v3")
        b.e("v_permlane32_swap_b32 v4, v5")
        b.e("v_add_f32 v2, v2, v3")
        b.e("v_add_f32 v4, v4, v5")

    def epilogue(self, shape):
        b = Block(f"epi_{shape}")
        b.e(f"L_epi_{shape}:")
        stamp(b)
        b.e("s_barrier")
        if shape == 'A':
            extra = self.pf_group('V', 0) + self.pf_group('K', 2) + self.pf_group('V', 1) + self.pf_group('K', 3)
            b.e("v_rcp_f32 v2, v2")
            b.e("v_rcp_f32 v4, v4")
            b.e("s_nop 0")
            self.store_chunks(b, (0, 1), lambda x, i, d: [f"v_mul_f32 v{d}, v{2+2*x}, v{O+64*x+i}"], extra)
            b.e("s_waitcnt vmcnt(26)")
            b.e("s_branch L_job")
        else:
            b.e(f"""v_lshlrev_b32 v6, 4, v{V_LANE}
                    s_xor_b32 s{S_T0+1}, s{S_STG}, 0x10000
                    v_add_u32 v{XW}, s{S_STG}, v6
                    v_add_u32 v{XR}, s{S_T0+1}, v6
                    s_cmp_eq_u32 s{S_PAIR}, 0
                    s_cbranch_scc0 L_epiB_1""")
            for own in range(2):
                oth = own ^ 1
                extra = self.pf_group('V', 0) + self.pf_group('K', 2) + self.pf_group('V', 1) + self.pf_group('K', 3)
                if own == 1: b.e("L_epiB_1:")
                b.e(f"v_mov_b32 v6, v{MC+oth}")
                b.e(f"v_mov_b32 v7, v{2+2*oth}")
                b.e(f"ds_write_b64 v{XW}, v[6:7]")
                b.e("s_waitcnt lgkmcnt(0)")
                b.e("s_barrier")
                b.e(f"ds_read_b64 v[6:7], v{XR}")
                for t in extra.pop(0) + extra.pop(0) + extra.pop(0): b.e(t)
                b.e("s_waitcnt lgkmcnt(0)")
                b.e("s_barrier")
                for r in range(2):
                    for i in range(8):
                        b.e(f"ds_write_b128 v{XW}, {vr(O+64*oth+32*r+4*i,4)} offset:{i*1024}")
                    if r == 0:
                        lo = 2 + 2*own
                        b.e(f"""v_max_f32 v12, v{MC+own}, v6
                                v_sub_f32 v13, v6, v12
                                v_sub_f32 v12, v{MC+own}, v12
                                v_exp_f32 v13, v13
                                v_exp_f32 v12, v12
                                s_nop 0
                                v_mul_f32 v7, v7, v13
                                v_fma_f32 v7, v{lo}, v12, v7
                                v_rcp_f32 v7, v7
                                s_nop 0
                                v_mul_f32 v12, v12, v7
                                v_mul_f32 v13, v13, v7""")
                    b.e("s_waitcnt lgkmcnt(0)")
                    b.e("s_barrier")
                    for i in range(8):
                        b.e(f"ds_read_b128 {vr(O+64*oth+32*r+4*i,4)}, v{XR} offset:{i*1024}")
                    for t in extra.pop(0) + extra.pop(0) + extra.pop(0): b.e(t)
                    b.e("s_waitcnt lgkmcnt(0)")
                    b.e("s_barrier")
                self.store_chunks(b, (own,), lambda x, i, d, own=own, oth=oth: [f"v_mul_f32 v{d}, v12, v{O+64*own+i}", f"v_fma_f32 v{d}, v13, v{O+64*oth+i}, v{d}"], extra)
                b.e("s_waitcnt vmcnt(18)")
                b.e("s_branch L_job")
        return b

    def rare(self, x, par):
        b = Block(f"rare_{x}_{par}")
        b.e(f"L_rare_{x}_{par}:")
        s0 = S + 16*x
        b.e("s_nop 15")
        b.e(f"v_max3_f32 v2, v{s0}, v{s0+1}, v{s0+2}")
        for i in range(3, 15, 2):
            b.e(f"v_max3_f32 v2, v2, v{s0+i}, v{s0+i+1}")
        b.e(f"v_max_f32 v2, v2, v{s0+15}")
        b.e("v_mov_b32 v3, v2")
        b.e("s_nop 1")
        b.e("v_permlane32_swap_b32 v2, v3")
        b.e("v_max_f32 v2, v2, v3")
        b.e(f"v_mul_f32 v2, s{S_C}, v2")
        b.e(f"v_max_f32 v2, v2, v{MC+x}")
        b.e(f"v_sub_f32 v3, v{MC+x}, v2")
        b.e("v_exp_f32 v3, v3")
        b.e(f"v_mov_b32 v{MC+x}, v2")
        b.e(f"v_mul_f32 v{L+2*x+par}, v3, v{L+2*x+(par^1)}")
        for i in range(64):
            b.e(f"v_mul_f32 v{O+64*x+i}, v3, v{O+64*x+i}")
        for k in range(8):
            b.e(f"v_fma_f32 v4, v{s0+2*k}, s{S_C}, -v{MC+x}")
            b.e(f"v_fma_f32 v5, v{s0+2*k+1}, s{S_C}, -v{MC+x}")
            b.e("v_exp_f32 v4, v4")
            b.e("v_exp_f32 v5, v5")
            b.e("s_nop 0")
            b.e(f"v_add_f32 v{L+2*x+par}, v{L+2*x+par}, v4")
            b.e(f"v_add_f32 v{L+2*x+par}, v{L+2*x+par}, v5")
            b.e(f"v_cvt_pk_bf16_f32 v{P+8*x+k}, v4, v5")
        b.e("s_nop 1")
        b.e(f"s_setpc_b64 {sr(S_RET,2)}")
        return b

    def prologue(self):
        b = Block("prologue")
        b.e(f"""s_cmp_ge_u32 s2, 256
                s_cbranch_scc1 L_end
                s_load_dwordx4 s[52:55], s[0:1], 0
                s_load_dwordx2 s[56:57], s[0:1], 16
                s_load_dwordx2 s[58:59], s[0:1], 32
                s_getpc_b64 {sr(S_TAB,2)}""")
        b.e("L_pc:")
        b.e(f"""s_add_u32 s{S_TAB}, s{S_TAB}, jobtab-L_pc
                s_addc_u32 s{S_TAB+1}, s{S_TAB+1}, 0
                v_lshrrev_b32 v1, 6, v0
                v_and_b32 v{V_LANE}, 63, v0
                v_readfirstlane_b32 s{S_W}, v1
                s_nop 3
                s_lshr_b32 s{S_PAIR}, s{S_W}, 1
                s_and_b32 s{S_HP}, s{S_W}, 1
                s_lshl_b32 s3, s2, 7
                s_lshl_b32 s4, s{S_PAIR}, 4
                s_add_u32 s3, s3, s4
                s_add_u32 s{S_TAB}, s{S_TAB}, s3
                s_addc_u32 s{S_TAB+1}, s{S_TAB+1}, 0
                s_load_dwordx4 {sr(S_N,4)}, {sr(S_TAB,2)}, 0
                s_mov_b32 s{S_C}, {C_SCALE:#x}
                s_mov_b32 s{S_THR}, {THR:#x}
                s_mov_b32 s{S_OOB}, 0x80000000
                s_mov_b32 s{S_TRASH}, 0x3c000
                s_lshl_b32 s{S_STG}, s{S_PAIR}, 16
                s_lshl_b32 s3, s{S_HP}, 13
                s_add_u32 s{S_STG}, s{S_STG}, s3
                s_add_u32 s{S_STG}, s{S_STG}, 0xc000""")
        b.e(f"""v_lshrrev_b32 v5, 4, v{V_LANE}
                v_and_b32 v6, 15, v{V_LANE}
                v_xor_b32 v7, v6, v5
                v_lshlrev_b32 v7, 4, v7
                v_lshl_add_u32 v{V_DKB}, v5, 10, v7
                v_lshlrev_b32 v7, 2, v5
                v_xor_b32 v7, v6, v7
                v_lshlrev_b32 v7, 4, v7
                v_lshl_add_u32 v{V_DVB}, v5, 10, v7
                v_lshl_add_u32 v{DQ}, v5, 12, v7""")
        for i in range(4):
            b.e(f"v_mov_b32 v{DK+i}, 0"); b.e(f"v_mov_b32 v{DV+i}, 0")
        b.e(f"""s_waitcnt lgkmcnt(0)
                s_mov_b32 s{SRD_Q}, s52
                s_mov_b32 s{SRD_Q+1}, s53
                s_mov_b32 s{SRD_Q+2}, {QBYTES}
                s_mov_b32 s{SRD_Q+3}, 0x00020000
                s_mov_b32 s{SRD_K}, s54
                s_mov_b32 s{SRD_K+1}, s55
                s_mov_b32 s{SRD_K+2}, {KBYTES}
                s_mov_b32 s{SRD_K+3}, 0x00020000
                s_mov_b32 s{SRD_V}, s56
                s_mov_b32 s{SRD_V+1}, s57
                s_mov_b32 s{SRD_V+2}, {KBYTES}
                s_mov_b32 s{SRD_V+3}, 0x00020000
                s_mov_b32 s{SRD_O}, s58
                s_mov_b32 s{SRD_O+1}, s59
                s_mov_b32 s{SRD_O+2}, {QBYTES}
                s_mov_b32 s{SRD_O+3}, 0x00020000""")
        if STAMPS:
            b.e(f"""s_load_dwordx2 s[84:85], s[0:1], 48
                    s_waitcnt lgkmcnt(0)
                    s_mov_b32 s86, 0x1000000
                    s_mov_b32 s87, 0x00020000
                    s_lshl_b32 s82, s2, 2
                    s_add_u32 s82, s82, s{S_W}
                    s_lshl_b32 s82, s82, 8""")
            stamp(b, True)
            stamp(b)
        b.e(f"s_mov_b32 s{S_QCNT}, 1")
        b.e(f"s_mov_b32 s{S_QADJV}, 0")
        b.e(f"s_call_b64 {sr(S_RET,2)}, L_pfsetup")
        for gg in self.pf_group('K', 0):
            for t in gg: b.e(t)
        self.qstate(b)
        b.e(f"s_call_b64 {sr(S_RET,2)}, L_qrem")
        for kind, u in (('K', 1), ('V', 0), ('K', 2), ('V', 1), ('K', 3)):
            for gg in self.pf_group(kind, u):
                for t in gg: b.e(t)
        b.e(f"""s_mov_b32 m0, s{S_TRASH}
                s_mov_b32 s{S_QUSE}, s{S_OOB}""")
        b.e(dma_q())
        b.e(f"""v_mov_b32 v{V_M16}, 0xffff
                v_and_b32 v12, 31, v{V_LANE}
                v_lshrrev_b32 v2, 5, v{V_LANE}
                v_lshlrev_b32 v3, 2, v2
                v_sub_u32 v3, v3, v12
                v_mov_b32 v4, {NEGBIG:#x}""")
        for r in range(16):
            kk = 8*(r//4) + r % 4
            b.e(f"v_cmp_lt_i32 vcc, {-kk}, v3")
            b.e("s_nop 1")
            b.e(f"v_cndmask_b32 v{MASK+r}, 0, v4, vcc")
        b.e("""v_and_b32 v5, 15, v12
               v_xor_b32 v5, v5, v2
               v_lshlrev_b32 v5, 4, v5
               v_lshl_add_u32 v5, v12, 8, v5""")
        for s in range(8):
            b.e(f"v_xor_b32 v{KADDR+s}, {32*s}, v5")
        b.e(f"""v_and_b32 v5, 3, v12
                v_lshlrev_b32 v5, 2, v5
                v_xor_b32 v5, v5, v2
                v_lshlrev_b32 v5, 4, v5
                v_lshl_add_u32 v{QRA}, v12, 8, v5""")
        b.e(f"""v_bfe_u32 v5, v{V_LANE}, 2, 2
                v_lshl_add_u32 v6, v2, 2, v5
                v_lshlrev_b32 v6, 8, v6
                v_lshl_add_u32 v6, v5, 6, v6
                v_bfe_u32 v7, v{V_LANE}, 4, 1
                v_lshl_add_u32 v6, v7, 5, v6
                v_and_b32 v7, 3, v{V_LANE}
                v_lshl_add_u32 v6, v7, 3, v6""")
        for db in range(4):
            b.e(f"v_xor_b32 v{VADDR+db}, {64*db}, v6")
        b.e(f"""s_and_b32 s{S_T0}, s{S_N+3}, 0x600
                s_cmp_eq_u32 s{S_T0}, 0
                s_cselect_b32 s{S_FIRST}, 1, 0
                s_cbranch_scc1 L_fast
                s_waitcnt vmcnt(11)
                L_fast:
                s_waitcnt vmcnt(19)""")
        return b

    def qstate(self, b):
        N = S_N
        b.e(f"""s_lshl_b32 s{S_T0}, s{S_HP}, 9
                s_add_u32 s{S_QSO}, s{N}, s{S_T0}
                s_lshl_b32 s{S_T0}, s{S_PAIR}, 8
                s_add_u32 s{S_T0+1}, s{S_QSO}, s{S_T0}
                s_lshl_b32 s{S_QST}, s{S_HP}, 14
                s_lshl_b32 s{S_T0}, s{S_PAIR}, 16
                s_add_u32 s{S_T0+2}, s{S_QST}, s{S_T0}
                s_add_u32 s{S_T0+2}, s{S_T0+2}, 0x10000
                s_add_u32 s{S_QST}, s{S_QST}, 0x20000
                s_lshl_b32 s{S_T0}, s{S_PAIR}, 13
                s_add_u32 s{S_T0+3}, s{S_QST}, s{S_T0}
                s_bitcmp1_b32 s{N+3}, 10
                s_cselect_b32 s{S_QSO}, s{S_T0+1}, s{S_QSO}
                s_cselect_b32 s{S_QST}, s{S_QST}, s{S_T0+2}
                s_cselect_b32 s{S_QM0}, s{S_T0+3}, s{S_T0+2}
                s_cselect_b32 s{S_QCNT}, 9, 17
                s_cselect_b32 s{S_QADJV}, 0, {(256 - 131072) & 0xffffffff:#x}
                s_bitcmp1_b32 s{N+3}, 11
                s_cselect_b32 s{S_QCNT}, s{S_QCNT}, 0""")

    def pfsetup(self):
        N = S_N
        b = Block("pfsetup")
        b.e("L_pfsetup:")
        b.e(f"""s_bitcmp1_b32 s{N+3}, 10
                s_cselect_b32 s{S_T0}, s{S_HP}, s{S_W}
                s_cselect_b32 s{S_T0+1}, 2, 1
                s_cselect_b32 s{S_RING}, s{S_PAIR}, 0
                s_lshl_b32 s{S_G0}, s{S_T0}, s{S_T0+1}
                s_lshl_b32 s{S_RING}, s{S_RING}, 16
                s_lshl_b32 s{S_T0}, s{S_G0}, 10
                s_add_u32 s{S_T0}, s{S_T0}, s{S_RING}""")
        for i in range(4):
            b.e(f"s_add_u32 s{S_M0K+i}, s{S_T0}, {i*8192}")
            b.e(f"s_add_u32 s{S_M0V+i}, s{S_T0}, {32768+i*8192}")
        for i in range(4):
            b.e(f"""s_add_u32 s{S_T0}, s{S_G0}, {i}
                    s_and_b32 s{S_T0+1}, s{S_T0}, 3
                    s_lshl_b32 s{S_T0+1}, s{S_T0+1}, 6
                    s_lshl_b32 s{S_T0}, s{S_T0}, 12
                    s_sub_u32 s{S_T0}, s{S_T0}, {i*1024}
                    v_xor_b32 v{DK+i}, s{S_T0+1}, v{V_DKB}
                    v_add_u32 v{DK+i}, s{S_T0}, v{DK+i}
                    v_add_u32 v{DV+i}, s{S_T0}, v{V_DVB}""")
        b.e("L_qrem:")
        for t in Q_POST[2:]: b.e(t)
        b.e(f"""s_cmp_gt_i32 s{S_QCNT}, 0
                s_cbranch_scc0 L_qrem_done
                s_mov_b32 s{S_QUSE}, s{S_QSO}
                s_mov_b32 m0, s{S_QM0}""")
        b.e(Q_POST[0])
        b.e(dma_q())
        b.e(Q_POST[1])
        b.e("s_branch L_qrem")
        b.e("L_qrem_done:")
        b.e(f"s_setpc_b64 {sr(S_RET,2)}")
        return b

    def jobstart(self):
        b = Block("jobstart")
        J = S_J
        b.e("L_job:")
        b.e(f"""s_bitcmp1_b32 s{S_N+3}, 11
                s_cbranch_scc0 L_end
                s_mov_b32 s{J}, s{S_N}
                s_mov_b32 s{J+1}, s{S_N+1}
                s_mov_b32 s{J+2}, s{S_N+2}
                s_mov_b32 s{J+3}, s{S_N+3}
                s_add_u32 s{S_TAB}, s{S_TAB}, 32
                s_addc_u32 s{S_TAB+1}, s{S_TAB+1}, 0
                s_load_dwordx4 {sr(S_N,4)}, {sr(S_TAB,2)}, 0
                v_add_u32 v2, s{S_QST}, v{QRA}""")
        for i in range(8):
            b.e(f"v_xor_b32 v{P+i}, {32*i}, v2")
        b.e("s_barrier")
        stamp(b)
        self.qreads(b, 0)
        self.qreads(b, 1)
        b.e(f"""s_lshl_b32 s{S_T0}, s{S_HP}, 9
                s_add_u32 s{S_QOFF}, s{J}, s{S_T0}""")
        for i in range(8):
            b.e(f"v_and_or_b32 v{KADDR+i}, v{KADDR+i}, v{V_M16}, s{S_RING}")
        for i in range(4):
            b.e(f"v_and_or_b32 v{VADDR+i}, v{VADDR+i}, v{V_M16}, s{S_RING}")
        b.e(f"""s_bitcmp1_b32 s{J+3}, 8
                s_cselect_b32 s{S_T0}, -1, 0""")
        for r in range(16):
            b.e(f"v_and_b32 v{MJ+r}, s{S_T0}, v{MASK+r}")
        b.e(f"""s_sub_u32 s{S_REM}, s{J+2}, 2
                s_sub_u32 s{S_VOFF}, s{J+1}, 0x10000
                s_waitcnt lgkmcnt(0)""")
        self.qstate(b)
        stamp(b)
        b.e(f"""s_bitcmp1_b32 s{J+3}, 10
                s_cbranch_scc1 L_pre_B""")
        return b

    def pre(self, shape):
        J = S_J
        b = Block(f"pre_{shape}")
        b.e(f"L_pre_{shape}:")
        b.e(f"s_bitcmp1_b32 s{J+3}, 9")
        b.e(f"s_cbranch_scc0 L_head_{shape}_0")
        return b

    def build(self, wg):
        self.add(self.prologue())
        self.add(self.jobstart())
        for shape in 'AB':
            self.add(self.pre(shape))
            self.add(self.idle_step(shape))
            self.add(self.head(shape, 1))
            self.add(self.head(shape, 0))
            al = Block(f"align_{shape}"); al.e(".p2align 6"); self.add(al)
            for ph in range(4): self.add(self.step(shape, ph))
            for ph in range(4): self.add(self.tail(shape, ph))
            self.add(self.epilogue(shape))
        self.add(self.pfsetup())
        for x in range(2):
            for par in range(2): self.add(self.rare(x, par))
        self.add(self.stubs)
        end = Block("end"); end.e("L_end:")
        if STAMPS:
            end.e("s_cmp_ge_u32 s2, 256"); end.e("s_cbranch_scc1 L_end2")
            stamp(end); end.e("s_waitcnt vmcnt(0)"); stamp(end); stamp(end, True)
            end.e("L_end2:")
        end.e("s_endpgm"); self.add(end)
        B = self.blocks
        paths = []
        for sh in 'AB':
            lp = [f"loop_{sh}_{p}" for p in range(4)]
            paths.append(["prologue", "jobstart", f"pre_{sh}", f"head_{sh}_0"] + lp + lp)
            paths.append([f"pre_{sh}", f"idle_{sh}", f"head_{sh}_1"] + lp[1:] + lp)
            for ph in range(4):
                paths.append([lp[(ph-2) % 4], lp[(ph-1) % 4], f"tail_{sh}_{ph}", f"epi_{sh}", "jobstart"])
            paths.append([f"head_{sh}_0", f"tail_{sh}_0", f"epi_{sh}"])
            paths.append([f"head_{sh}_1", f"tail_{sh}_1", f"epi_{sh}"])
        paths.append(["pfsetup"])
        for x in range(2):
            for par in range(2): paths.append([f"rare_{x}_{par}", "loop_A_0"])
        nprob = 0
        for p in paths:
            seq = sum((B[n].ins for n in p), [])
            for pr in check_hazards(seq, "+".join(p)):
                print("HAZARD", pr, file=sys.stderr); nprob += 1
        assert nprob == 0
        txt = ""
        for n in self.order: txt += B[n].text()
        return txt

def table(wg):
    CU = sched.CU
    words = []
    for w in range(256):
        ent = []
        for (seq, kvh, kind, b, N) in wg[w]:
            s0, Ls = CU[seq], CU[seq+1] - CU[seq]
            def q(bb): return ((s0 + 32*bb) * 16 + kvh * 4) * 256
            def kv(t): return ((s0 + 32*t) * 4 + kvh) * 256
            def nv(bb): return max(0, min(32, Ls - 32*bb))
            if kind == 'A':
                ent += [q(b), kv(b+1), N, nv(b) | 1 << 8 | 1 << 9 | 1 << 11]
                ent += [q(b+1), kv(b+1), N, nv(b+1) | 1 << 8 | 1 << 11]
            else:
                n = b + 1
                assert n >= 2 and N == (n + 1) // 2
                n0 = n - N
                d = N - n0
                ent += [q(b), kv(b), N, nv(b) | 1 << 8 | 1 << 10 | 1 << 11]
                ent += [q(b), kv(n0 - 1 + d), N, nv(b) | d << 9 | 1 << 10 | 1 << 11]
        assert len(ent) <= 24
        ent += [0] * (32 - len(ent))
        words += ent
    return words

THRB, OVH = 32, 4.0
def main(out):
    wg, st = sched.build(THRB, OVH)
    g = Gen()
    body = g.build(wg)
    hdr = open(f"cdna_kernels/{NAME}.s.ref").read().split("; Override launch")[0]
    s = hdr
    s += f"; @launch grid=(256,1,1) block=(256,1,1) lds={LDS_BYTES}\n"
    s += f""".amdgcn_target "amdgcn-amd-amdhsa--gfx950"
.text
.globl {NAME}_kernel
.p2align 8
.type {NAME}_kernel,@function
{NAME}_kernel:
"""
    s += body
    s += ".p2align 6\n.type jobtab,@object\njobtab:\n"
    w = table(wg)
    for i in range(0, len(w), 8):
        s += ".long " + ", ".join(f"{x:#x}" for x in w[i:i+8]) + "\n"
    s += f".size jobtab, {len(w)*4}\n"
    s += f""".section .rodata,"a"
.p2align 6
.amdhsa_kernel {NAME}_kernel
  .amdhsa_next_free_vgpr 384
  .amdhsa_next_free_sgpr 102
  .amdhsa_accum_offset 256
  .amdhsa_group_segment_fixed_size 0
  .amdhsa_kernarg_size 56
  .amdhsa_user_sgpr_count 2
  .amdhsa_user_sgpr_kernarg_segment_ptr 1
  .amdhsa_system_sgpr_workgroup_id_x 1
.end_amdhsa_kernel
"""
    open(out, "w").write(s)

if __name__ == "__main__":
    args = [a for a in sys.argv[1:] if not a.startswith('-')]
    if '-stamps' in sys.argv: STAMPS = True
    main(args[0] if args else f"cdna_kernels/{NAME}.s")
```

```python
import itertools, random, json, os, math
CU = [0, 899, 1287, 3063, 3381, 3962, 4737, 5351, 7180]
LENS = [CU[i+1]-CU[i] for i in range(8)]
NB = [(L+31)//32 for L in LENS]

OVH = {'A': 4.5, 'B': 6.9}
BSTEP = 1.02
def jcost(j): return j[-1] * (BSTEP if j[2] == 'B' else 1.0) + OVH[j[2]]

def seq_jobs(seq, bset):
    nb = NB[seq]
    jobs = []
    b = 0
    while b < nb:
        if b + 1 < nb and b not in bset:
            jobs.append(('A', b, b + 2)); b += 2
        else:
            jobs.append(('B', b, (b + 2)//2))
            if b + 1 < nb: jobs.append(('B', b + 1, (b + 3)//2))
            b += 2
    return jobs

GROUPS = [[7, 5, 4, 3], [2, 0, 6, 1]]
HOME = {s: g for g in range(2) for s in GROUPS[g]}

def anneal(jobs, rnd, roam=22, iters=400000):
    n = len(jobs)
    c = [jcost(j) for j in jobs]
    ok = lambda i, k: (k // 32 == HOME[jobs[i][0]]) or jobs[i][-1] <= roam
    order = sorted(range(n), key=lambda i: -c[i])
    asg = [0]*n; load = [0.0]*64; cnt = [0]*64
    for i in order:
        k = min((k for k in range(64) if cnt[k] < 3 and ok(i, k)), key=lambda k: (load[k], k // 32 != HOME[jobs[i][0]]))
        asg[i] = k; load[k] += c[i]; cnt[k] += 1
    avg = sum(load) / 64
    f = lambda x: math.exp((x - avg) * 1.5)
    best = (max(load), list(asg))
    T = 1.0
    for it in range(iters):
        T = 2.0 * (1 - it / iters) ** 2 + 1e-3
        i = rnd.randrange(n); a = asg[i]
        if rnd.random() < 0.4:
            k = rnd.randrange(64)
            if k == a or cnt[k] >= 3 or not ok(i, k): continue
            d = f(load[a] - c[i]) + f(load[k] + c[i]) - f(load[a]) - f(load[k])
            if d < 0 or rnd.random() < math.exp(-d / T):
                load[a] -= c[i]; load[k] += c[i]; cnt[a] -= 1; cnt[k] += 1; asg[i] = k
        else:
            j = rnd.randrange(n); k = asg[j]
            if k == a or not ok(i, k) or not ok(j, a): continue
            dd = c[i] - c[j]
            d = f(load[a] - dd) + f(load[k] + dd) - f(load[a]) - f(load[k])
            if d < 0 or rnd.random() < math.exp(-d / T):
                load[a] -= dd; load[k] += dd; asg[i] = k; asg[j] = a
        if it % 50 == 0:
            m = max(load)
            if m < best[0] - 1e-9: best = (m, list(asg))
    m = max(load)
    if m < best[0]: best = (m, list(asg))
    bins = [[] for _ in range(64)]
    for i, k in enumerate(best[1]): bins[k].append(jobs[i])
    return best[0], bins

def search(seed=1):
    rnd = random.Random(seed)
    best = None
    for t7 in (38, 40, 42, 44):
        for t2 in (t7 - 2, t7, t7 + 2):
            bsets = [set() for _ in range(8)]
            bsets[7] = set(b for b in range(0, NB[7], 2) if b + 2 > t7)
            bsets[2] = set(b for b in range(0, NB[2], 2) if b + 2 > t2)
            jobs = []
            for s in range(8):
                for (kind, b, N) in seq_jobs(s, bsets[s]): jobs.append((s, 0, kind, b, N))
            m, bins = anneal(jobs, rnd)
            print(t7, t2, round(m, 2), round(sum(map(jcost, jobs)) / 64, 2), len(jobs))
            if best is None or m < best[0]: best = (m, bins)
    return best[1]

CACHE = os.path.join(os.path.dirname(os.path.abspath(__file__)), "sched_cache.json")
def build(*a):
    if os.path.exists(CACHE):
        bins = [[tuple(j) for j in b] for b in json.load(open(CACHE))]
    else:
        bins = search()
        json.dump(bins, open(CACHE, "w"))
    load = [sum(map(jcost, b)) for b in bins]
    wg = [None]*256
    for kvh in range(4):
        for k in range(64):
            xcd = kvh * 2 + k // 32
            wg[(k % 32) * 8 + xcd] = [(s, kvh, kd, b, N) for (s, _, kd, b, N) in sorted(bins[k], key=lambda j: -j[-1])]
    return wg, (max(load), sum(load) / 64, sum(len(b) for b in bins))

if __name__ == "__main__":
    if os.path.exists(CACHE): os.remove(CACHE)
    wg, st = build()
    print(st)
    for k in range(0, 256, 8): print([(j[0], j[2], j[-1]) for j in wg[k]], [(j[0], j[2], j[-1]) for j in wg[k+1]])
```

```python
import sys, struct, math
from asmlib import *
import sched

NAME = "standalone__ragged_sequences_varlen_flash_attn__ragged"
T_TOK = 7180
QBYTES = T_TOK * 16 * 256
KBYTES = T_TOK * 4 * 256
def f32(x): return struct.unpack('<I', struct.pack('<f', x))[0]
C_SCALE = f32(math.log2(math.e) / math.sqrt(128.0))
THR = f32(2.0 ** 40)
NEGBIG = f32(-1.0e30)
LDS_BYTES = 163840
NT_Q = ' nt'; NT_KV = ''; NT_O = ' nt'
WARM = False
NT_PF = ' nt'
X_NOST = False; X_NOSTG = False; X_NOPF = False; X_NOBAR = False; X_NOVM = False; X_NODMA = False; X_NOLDS = False; X_NOSALU = False

DKR = {'A': [0, 1], 'B': [48, 49, 50, 51]}
DVR = {'A': [78, 79], 'B': [52, 53, 54, 55]}
DQ = 8
V_WARM = 12
V_DUMMY = 13
V_M16 = 14; V_LANE = 15
MASK = 16; MJ = 32
VADDR = 56; KADDR = 60
MC = 68; L = 70; TT = 74
P = 80; S = 96; O = 128
AQ = 0; AK = 64; AV = 96; AZ = 128
OV = MJ; STW = MJ + 4; STR = MJ + 5; XW = MJ + 6; XR = MJ + 7; XM = MJ + 8; XN = MJ + 9; E0 = MJ + 10; E1 = MJ + 11; FO = MJ + 12; FT = MJ + 14
S_FIRST, S_WSEL, S_Q2, S_QSO2, S_QM02 = 3, 4, 5, 6, 7
SRD_Q, SRD_K, SRD_V, SRD_O = 8, 12, 16, 20
S_C, S_THR, S_OOB, S_W, S_PAIR, S_HP = 24, 25, 26, 27, 28, 29
S_RET = 30; S_TAB = 32; S_J = 36
S_QOFF, S_VOFF, S_REM, S_KUSE, S_VUSE, S_KT, S_QCNT, S_QSO, S_QM0, S_QUSE = range(40, 50)
S_T0 = 50
S_M0K = 60; S_M0V = 64; S_RING = 68; S_QADJ = 69; S_QADJV = 70; S_QMADJ = 71
S_N = 72; S_TRASH = 76; S_QST = 77; S_STG = 78; S_QST2 = 79
S_JT = 88; S_MBA = 96; S_MBB = 97

def vr(b, n): return f"v[{b}:{b+n-1}]"
def ar(b, n): return f"a[{b}:{b+n-1}]"
def sr(b, n): return f"s[{b}:{b+n-1}]"
G = {'A': 2, 'B': 4}

def mfma_q(x, s, first_c):
    c = first_c if s == 0 else vr(S + 16*x, 16)
    return f"v_mfma_f32_32x32x16_bf16 {vr(S+16*x,16)}, {ar(AK+4*s,4)}, {ar(AQ+32*x+4*s,4)}, {c}"
def mfma_v(x, j):
    u, db = j // 4, j % 4
    o = vr(O + 64*x + 16*db, 16)
    return f"v_mfma_f32_32x32x16_bf16 {o}, {ar(AV+4*j,4)}, {vr(P+8*x+4*u,4)}, {o}"
def mfma_z(i):
    return f"v_mfma_f32_32x32x16_bf16 {vr(O+16*i,16)}, {ar(AZ,4)}, {ar(AZ,4)}, 0"
def kread(s, slot):
    return f"ds_read_b128 {ar(AK+4*s,4)}, v{KADDR+s} offset:{slot*8192}"
def vread(j, e, slot):
    u, db = j // 4, j % 4
    return f"ds_read_b64_tr_b16 {ar(AV+4*j+2*e,2)}, v{VADDR+db} offset:{32768 + slot*8192 + (16*u+8*e)*256}"
def dma_k(sh, i, suse=S_KUSE):
    return f"buffer_load_dwordx4 v{DKR[sh][i]}, {sr(SRD_K,4)}, s{suse} offen offset:{i*1024}{NT_KV if suse == S_KUSE else NT_PF} lds"
def dma_v(sh, i, suse=S_VUSE):
    return f"buffer_load_dwordx4 v{DVR[sh][i]}, {sr(SRD_V,4)}, s{suse} offen offset:{i*1024}{NT_KV if suse == S_VUSE else NT_PF} lds"
def dma_q(i=0):
    return f"buffer_load_dwordx4 v{DQ+i}, {sr(SRD_Q,4)}, s{S_QUSE} offen{NT_Q} lds"
Q_PRE = [f"s_cmp_gt_i32 s{S_QCNT}, 0",
         f"s_cselect_b32 s{S_QUSE}, s{S_QSO}, s{S_OOB}",
         f"s_cselect_b32 m0, s{S_QM0}, s{S_TRASH}"]
Q_POST = [f"s_add_u32 s{S_QSO}, s{S_QSO}, 0x4000",
          f"s_add_u32 s{S_QM0}, s{S_QM0}, 0x400",
          f"s_sub_u32 s{S_QCNT}, s{S_QCNT}, 1",
          f"s_cmp_eq_u32 s{S_QCNT}, 8",
          f"s_cselect_b32 s{S_QADJ}, s{S_QADJV}, 0",
          f"s_cselect_b32 s{S_QM0}, s{S_QMADJ}, s{S_QM0}",
          f"s_add_u32 s{S_QSO}, s{S_QSO}, s{S_QADJ}"]
def opF(x, e): return f"v_fma_f32 v{TT+e%4}, v{S+16*x+e}, s{S_C}, -v{MC+x}"
def opE(x, e): return f"v_exp_f32 v{TT+e%4}, v{TT+e%4}"
def opA(x, e, par):
    src = L + 2*x + (par ^ 1) if e == 0 else L + 2*x + par
    return f"v_add_f32 v{L+2*x+par}, v{src}, v{TT+e%4}"
def opC(x, k): return f"v_cvt_pk_bf16_f32 v{P+8*x+k}, v{TT+(2*k)%4}, v{TT+(2*k+1)%4}"

STAMPS = False
def stamp(b, real=False):
    if not STAMPS: return
    b.e(f"""{'s_memrealtime' if real else 's_memtime'} s[80:81]
            s_waitcnt lgkmcnt(0)
            v_mov_b32 v6, s80
            v_mov_b32 v7, s82
            s_add_u32 s82, s82, 4
            buffer_store_dword v6, v7, s[84:87], 0 offen""")

def cost(t):
    op = t.split()[0]
    if op.endswith(':'): return 0
    if op.startswith('v_exp') or op.startswith('v_rcp') or op.startswith('buffer'): return 2
    if op == 's_nop': return int(t.split()[1]) + 1
    return 1

def weave(b, mfmas, mem, valu, budget=6, mem_per_gap=2):
    mem = list(mem); valu = list(valu)
    for m in mfmas:
        b.e(m)
        used = 0
        for _ in range(mem_per_gap):
            if mem:
                it = mem.pop(0)
                for t in it: b.e(t); used += cost(t)
        while valu and used + cost(valu[0]) <= budget:
            t = valu.pop(0); b.e(t); used += cost(t)
    for it in mem:
        for t in it: b.e(t)
    for t in valu: b.e(t)

class Gen:
    def __init__(self):
        self.blocks = {}
        self.order = []
        self.stubs = Block("stubs")
        self.nstub = 0
    def add(self, b):
        self.blocks[b.name] = b; self.order.append(b.name); return b
    def uid(self):
        self.nstub += 1; return self.nstub

    def check_site(self, b, x, par):
        k = self.uid()
        b.e(f"s_cbranch_vccnz L_stub{k}")
        b.e(f"L_ret{k}:")
        self.stubs.e(f"L_stub{k}:")
        self.stubs.e(f"s_call_b64 {sr(S_RET,2)}, L_rare_{x}_{par}")
        self.stubs.e(f"s_branch L_ret{k}")

    def plan_mem(self, g):
        cap = [1 if i % 2 == 0 else 2 for i in range(32)]
        cap[15] = 0; cap[31] = 0
        place = {i: [] for i in range(32)}
        kd = [17, 19, 21, 23] if g == 4 else [19, 23]
        vd = [7, 9, 11, 13] if g == 4 else [9, 13]
        for i, gp in enumerate(kd): place[gp].append(('KD', i)); cap[gp] -= 2
        for i, gp in enumerate(vd): place[gp].append(('VD', i)); cap[gp] -= 2
        place[27].append(('QD',)); cap[27] -= 2
        items = [(16 + s, 30, ('K', s)) for s in range(8)]
        for j in range(8):
            for e in range(2): items.append((24 + j, 38 if j < 4 else 42, ('V', j, e)))
        pend = list(items)
        for t in range(16, 48):
            gp = t % 32
            while cap[gp] > 0:
                c = [it for it in pend if it[0] <= t]
                if not c: break
                it = min(c, key=lambda i: (i[1], i[0]))
                assert it[1] >= t, ("deadline miss", it, t)
                pend.remove(it); cap[gp] -= 1
                place[gp].append(it[2])
        assert not pend
        for gp in place:
            place[gp].sort(key=lambda it: 0 if it[0] in ('K', 'V') else 1)
        return place

    def sm_ops(self, gap, ph):
        ops = []
        s_par = ph % 2
        def elem(idx):
            if 0 <= idx < 16: return (1, idx, s_par, 'b0')
            if 16 <= idx < 32: return (0, idx - 16, s_par ^ 1, 'a1')
            if 32 <= idx < 48: return (1, idx - 32, s_par ^ 1, 'b1')
            return None
        x, e, par, tag = elem(gap + 1); ops.append((tag, opA(x, e, par)))
        if gap % 2 == 0:
            x, e, par, tag = elem(gap); ops.append((tag, opC(x, e // 2)))
        x, e, par, tag = elem(gap + 3); ops.append((tag, opF(x, e)))
        x, e, par, tag = elem(gap + 2); ops.append((tag, opE(x, e)))
        return ops

    def sm_stream(self, gaps, ph, tags):
        out = []
        for gp in gaps:
            ops = [t for tag, t in self.sm_ops(gp, ph) if tag in tags]
            ex = [t for t in ops if t.startswith('v_exp')]
            ot = [t for t in ops if not t.startswith('v_exp')]
            if ex and ot: out += ex + ot
            elif ex: out += ex + ["s_nop 0"]
            else: out += (["s_nop 0"] if ot else []) + ot
        return out

    def step(self, shape, ph):
        g = G[shape]
        b = Block(f"loop_{shape}_{ph}")
        b.e(f"L_loop_{shape}_{ph}:")
        place = self.plan_mem(g)
        free = {i: [] for i in range(32)}
        seq = []
        for gp in range(32):
            for it in place[gp]:
                if it[0] in ('K', 'V'): seq.append((gp, it))
        def count_after(need_items, wait_gap):
            lin = [(gp - 32, it) for gp, it in seq] + [(gp, it) for gp, it in seq]
            lin = [(t, it) for t, it in lin if t < wait_gap]
            last = max(max(i for i, (t, it) in enumerate(lin) if it == n) for n in need_items)
            return len(lin) - 1 - last
        wk = count_after([('K', s) for s in range(8)], 31)
        free[31].append(f"s_waitcnt lgkmcnt({wk})")
        wv0 = count_after([('V', j, e) for j in range(4) for e in range(2)], 7)
        free[7].append(f"s_waitcnt lgkmcnt({wv0})")
        wv1 = count_after([('V', j, e) for j in range(4, 8) for e in range(2)], 11)
        free[11].append(f"s_waitcnt lgkmcnt({wv1})")
        assert max(wk, wv0, wv1) <= 15
        if not X_NOVM: free[15].append(f"s_waitcnt vmcnt({4*g+2})")
        if not X_NOBAR: free[16].append("s_barrier")
        free[20].append(Q_PRE[0]); free[22].append(Q_PRE[1]); free[24].append(Q_PRE[2])
        free[28].append(Q_POST[0]); free[29].append(Q_POST[1])
        free[5].append(Q_POST[2]); free[6].append(Q_POST[3]); free[8].append(Q_POST[4]); free[9].append(Q_POST[5]); free[19].append(Q_POST[6])
        free[0].append(f"s_cmp_gt_i32 s{S_REM}, 0")
        free[1].append(f"s_cselect_b32 s{S_VUSE}, s{S_VOFF}, s{S_OOB}")
        free[2].append(f"s_cselect_b32 m0, s{S_M0V + (ph+3)%4}, s{S_TRASH}")
        free[3].append(f"s_sub_u32 s{S_KT}, s{S_VOFF}, 0x10000")
        free[4].append(f"s_sub_u32 s{S_VOFF}, s{S_VOFF}, 0x8000")
        free[10].append(f"s_cmp_gt_i32 s{S_REM}, 2")
        free[12].append(f"s_cselect_b32 s{S_KUSE}, s{S_KT}, s{S_OOB}")
        free[14].append(f"s_cselect_b32 m0, s{S_M0K + (ph+5)%4}, s{S_TRASH}")
        free[18].append(f"s_sub_u32 s{S_REM}, s{S_REM}, 1")
        free[30].append(f"s_cmp_ge_i32 s{S_REM}, -1")
        for gp in range(32):
            if gp < 8: b.e(mfma_q(0, gp, "0"))
            elif gp < 16: b.e(mfma_v(0, gp - 8))
            elif gp < 24: b.e(mfma_q(1, gp - 16, "0"))
            else: b.e(mfma_v(1, gp - 24))
            for t in free[gp]: b.e(t)
            for it in place[gp]:
                if X_NODMA and it[0] in ('KD', 'VD', 'QD'): continue
                if X_NOLDS and it[0] in ('K', 'V'): continue
                if it[0] == 'K': b.e(kread(it[1], (ph + 2) % 4 if gp >= 16 else (ph + 1) % 4))
                elif it[0] == 'V': b.e(vread(it[1], it[2], (ph + 1) % 4 if gp >= 16 else ph % 4))
                elif it[0] == 'KD': b.e(dma_k(shape, it[1]))
                elif it[0] == 'VD': b.e(dma_v(shape, it[1]))
                elif it[0] == 'QD': b.e(dma_q(ph))
            ops = self.sm_ops(gp, ph)
            if gp == 15:
                b.e(f"v_cmp_nge_f32 vcc, s{S_THR}, v{L+2*1+ph%2}")
            if gp == 31:
                b.e(f"v_cmp_nge_f32 vcc, s{S_THR}, v{L+2*0+(ph+1)%2}")
            for tag, t in ops: b.e(t)
            if gp == 15: self.check_site(b, 1, ph % 2)
            if gp == 31: self.check_site(b, 0, (ph + 1) % 2)
        b.e(f"s_cbranch_scc0 L_tail_{shape}_{(ph+1)%4}")
        if ph == 3: b.e(f"s_branch L_loop_{shape}_0")
        return b

    def dma_v_part(self, b, ph, shape):
        for t in Q_POST[2:]: b.e(t)
        b.e(f"""s_cmp_gt_i32 s{S_REM}, 0
                s_cselect_b32 s{S_VUSE}, s{S_VOFF}, s{S_OOB}
                s_cselect_b32 m0, s{S_M0V + (ph+3)%4}, s{S_TRASH}
                s_sub_u32 s{S_KT}, s{S_VOFF}, 0x10000
                s_sub_u32 s{S_VOFF}, s{S_VOFF}, 0x8000""")
        for i in range(G[shape]): b.e(dma_v(shape, i))
    def dma_k_part(self, ph, shape):
        return [f"s_cmp_gt_i32 s{S_REM}, 2",
                f"s_cselect_b32 s{S_KUSE}, s{S_KT}, s{S_OOB}",
                f"s_cselect_b32 m0, s{S_M0K + (ph+5)%4}, s{S_TRASH}",
                f"s_sub_u32 s{S_REM}, s{S_REM}, 1"] + [dma_k(shape, i) for i in range(G[shape])]
    def dma_q_part(self, dummy=False):
        if dummy:
            return [f"s_mov_b32 m0, s{S_TRASH}", f"s_mov_b32 s{S_QUSE}, s{S_OOB}", f"s_add_u32 s{S_QCNT}, s{S_QCNT}, 1", dma_q()]
        return Q_PRE + [Q_POST[0], dma_q(0), Q_POST[1]]

    def warm(self):
        N = S_N
        k = self.uid()
        o = [f"s_bitcmp1_b32 s{N+3}, 11", f"s_cbranch_scc0 L_wm{k}",
             f"s_cmp_eq_u32 s{S_HP}, 0", f"s_cbranch_scc0 L_wv{k}"]
        for u in range(4):
            o += [f"s_sub_u32 s{S_T0}, s{N+1}, {u*0x8000}", f"s_cmp_gt_i32 s{N+2}, {u}", f"s_cselect_b32 s{S_T0}, s{S_T0}, s{S_OOB}",
                  f"buffer_load_dword v{V_DUMMY}, v{V_WARM}, {sr(SRD_K,4)}, s{S_T0} offen"]
        o += [f"s_branch L_wm{k}", f"L_wv{k}:"]
        for u in range(3):
            o += [f"s_sub_u32 s{S_T0}, s{N+1}, {u*0x8000}", f"s_cmp_gt_i32 s{N+2}, {u}", f"s_cselect_b32 s{S_T0}, s{S_T0}, s{S_OOB}",
                  f"buffer_load_dword v{V_DUMMY}, v{V_WARM}, {sr(SRD_V,4)}, s{S_T0} offen"]
        o += [f"L_wm{k}:"]
        return o

    def pf_group(self, kind, u, N=S_N):
        k = self.uid()
        m0r = (S_M0K if kind == 'K' else S_M0V) + u
        d = dma_k if kind == 'K' else dma_v
        T = S_T0 + 4
        return [f"s_sub_u32 s{T}, s{N+1}, {u*0x8000}",
                f"s_cmp_gt_i32 s{N+2}, {u}",
                f"s_cselect_b32 s{T}, s{T}, s{S_OOB}",
                f"s_cselect_b32 m0, s{m0r}, s{S_TRASH}",
                f"s_bitcmp1_b32 s{N+3}, 10",
                f"s_cbranch_scc1 L_pfb{k}",
                d('A', 0, T), d('A', 1, T),
                f"s_branch L_pfe{k}",
                f"L_pfb{k}:",
                d('B', 0, T), d('B', 1, T), d('B', 2, T), d('B', 3, T),
                f"L_pfe{k}:"]

    def hookB(self, b, clear, wait_first, wait_norm):
        k = self.uid()
        b.e(f"""s_cmp_eq_u32 s{S_FIRST}, 0
                s_cbranch_scc1 L_hb{k}""")
        for kind, u in (('K', 2), ('V', 1), ('K', 3)):
            for t in self.pf_group(kind, u, S_J): b.e(t)
        b.e(f"""s_mov_b32 m0, s{S_TRASH}
                s_mov_b32 s{S_QUSE}, s{S_OOB}""")
        for _ in range(5): b.e(dma_q())
        if clear: b.e(f"s_mov_b32 s{S_FIRST}, 0")
        b.e(f"s_waitcnt vmcnt({wait_first})")
        b.e(f"s_branch L_hc{k}")
        b.e(f"L_hb{k}:")
        b.e(f"s_waitcnt vmcnt({wait_norm})")
        b.e(f"L_hc{k}:")

    def idle_step(self, shape):
        g = G[shape]
        ph = 3
        b = Block(f"idle_{shape}")
        b.e(f"L_idle_{shape}:")
        self.dma_v_part(b, ph, shape)
        self.hookB(b, shape == 'B', (16 if shape == 'A' else 0) + g + 3*g + 5, 4*g)
        b.e("s_barrier")
        for t in self.dma_k_part(ph, shape): b.e(t)
        for t in self.dma_q_part(True): b.e(t)
        return b

    def qreads(self, b, x):
        for s in range(8):
            b.e(f"ds_read_b128 {ar(AQ+32*x+4*s,4)}, v{P+8*x+s}")

    def maxtree(self, x):
        s0 = S + 16*x; t = 2 + 2*x
        o = [f"v_max3_f32 v{t}, v{s0}, v{s0+1}, v{s0+2}",
             f"v_max3_f32 v{t+1}, v{s0+3}, v{s0+4}, v{s0+5}"]
        for i in range(6, 14, 4):
            o += [f"v_max3_f32 v{t}, v{t}, v{s0+i}, v{s0+i+1}", f"v_max3_f32 v{t+1}, v{t+1}, v{s0+i+2}, v{s0+i+3}"]
        o += [f"v_max3_f32 v{t}, v{t}, v{s0+14}, v{s0+15}",
              f"v_max_f32 v{t}, v{t}, v{t+1}",
              f"v_mov_b32 v{t+1}, v{t}",
              "s_nop 1",
              f"v_permlane32_swap_b32 v{t}, v{t+1}",
              f"v_max_f32 v{t}, v{t}, v{t+1}",
              f"v_mul_f32 v{MC+x}, s{S_C}, v{t}"]
        return o

    def head(self, shape, f):
        g = G[shape]
        ph = (f - 1) % 4
        b = Block(f"head_{shape}_{f}")
        b.e(f"L_head_{shape}_{f}:")
        if shape == 'A' and f == 1:
            b.e(f"""s_cmp_eq_u32 s{S_FIRST}, 0
                    s_cbranch_scc1 L_hq1_skip
                    s_mov_b32 s{S_FIRST}, 0
                    s_waitcnt vmcnt({g + 3*g + 5 + g + 1})""")
            self.qreads(b, 0); self.qreads(b, 1)
            b.e("L_hq1_skip:")
        for s in range(8): b.e(kread(s, f % 4))
        b.e(mfma_z(0))
        self.dma_v_part(b, ph, shape)
        b.e(mfma_z(1))
        b.e(f"v_mov_b32 v{L+0+((f-1)%2)}, 0")
        b.e(f"v_mov_b32 v{L+2+((f-1)%2)}, 0")
        b.e(mfma_z(2))
        b.e("s_waitcnt lgkmcnt(0)")
        for s in range(8): b.e(mfma_q(0, s, vr(MJ, 16)))
        if shape == 'A' and f == 0:
            b.e(f"""s_cmp_eq_u32 s{S_FIRST}, 0
                    s_cbranch_scc1 L_hq_skip
                    s_waitcnt vmcnt({3*g})""")
            self.qreads(b, 1)
            b.e("s_waitcnt lgkmcnt(0)")
            b.e("L_hq_skip:")
        sma = self.sm_stream(range(13, 29), ph, ('a1',))
        rest = self.sm_stream(range(29, 32), ph, ('a1', 'b1'))
        valu = ["s_nop 5", "s_nop 4"] + self.maxtree(0) + sma
        qb = [mfma_q(1, s, vr(MJ, 16)) for s in range(8)]
        tmp = Block()
        vv = list(valu)
        for m in qb:
            tmp.e(m); used = 0
            while vv and used + cost(vv[0]) <= 6:
                t = vv.pop(0); tmp.e(t); used += cost(t)
        b.ext(tmp)
        if f == 0: self.hookB(b, True, g + 3*g + 5, 4*g)
        else: b.e(f"s_waitcnt vmcnt({4*g+1})")
        b.e("s_barrier")
        mem = [[kread(s, (f + 1) % 4)] for s in range(8)] + [self.dma_k_part(ph, shape)] + [self.dma_q_part(f == 0)]
        mem += [[vread(j, 0, f % 4), vread(j, 1, f % 4)] for j in range(8)]
        n1 = 12
        valu2 = vv[:n1] + self.maxtree(1) + vv[n1:] + rest
        weave(b, [mfma_z(i) for i in range(3, 8)], mem, valu2, budget=7, mem_per_gap=4)
        if WARM:
            for t in self.warm(): b.e(t)
        b.e("s_waitcnt lgkmcnt(0)")
        stamp(b)
        b.e(f"s_cmp_ge_i32 s{S_REM}, -1")
        b.e(f"s_cbranch_scc0 L_tail_{shape}_{f%4}")
        b.e(f"s_branch L_loop_{shape}_{f%4}")
        return b

    def pfsetup(self):
        N = S_N
        o = [f"s_lshl_b32 s{S_T0}, s{S_PAIR}, 16",
             f"s_bitcmp1_b32 s{N+3}, 10",
             f"s_cselect_b32 s{S_RING}, s{S_T0}, 0",
             f"s_cselect_b32 s{S_T0}, s{S_MBB}, s{S_MBA}"]
        for i in range(4):
            o.append(f"s_add_u32 s{S_M0K+i}, s{S_T0}, {i*8192}")
            o.append(f"s_add_u32 s{S_M0V+i}, s{S_T0}, {32768+i*8192}")
        return o

    def tail(self, shape, ph):
        g = G[shape]
        b = Block(f"tail_{shape}_{ph}")
        b.e(f"L_tail_{shape}_{ph}:")
        stamp(b)
        place = self.plan_mem(g)
        for gp in range(16):
            for it in place[gp]:
                if it[0] == 'V': b.e(vread(it[1], it[2], ph % 4))
        k = self.uid()
        b.e(f"""s_lshl_b32 s{S_T0}, s{S_Q2}, 4
                s_max_i32 s{S_T0}, s{S_T0}, s{S_QCNT}
                s_cmp_gt_i32 s{S_T0}, 1
                s_cbranch_scc0 L_nq{k}
                s_call_b64 {sr(S_RET,2)}, L_qrem_{ph}
                L_nq{k}:""")
        smb = self.sm_stream(range(0, 15), ph, ('b0',))
        for t in smb[:10]: b.e(t)
        b.e("s_waitcnt lgkmcnt(0)")
        pfs = self.pfsetup()
        weave(b, [mfma_v(0, j) for j in range(8)],
              [["s_barrier"] + pfs[:4], pfs[4:8], pfs[8:], self.pf_group('K', 0), [], [], self.pf_group('K', 1)], smb[10:], budget=8, mem_per_gap=1)
        b.e(f"v_cmp_nge_f32 vcc, s{S_THR}, v{L+2*1+ph%2}")
        b.e("s_nop 1")
        self.check_site(b, 1, ph % 2)
        ec = [f"v_mov_b32 v2, v{L+0+ph%2}", f"v_mov_b32 v3, v{L+0+ph%2}", f"v_mov_b32 v4, v{L+2+ph%2}", f"v_mov_b32 v5, v{L+2+ph%2}"] + self.epi_common(shape)
        weave(b, [mfma_v(1, j) for j in range(8)], [], ec, budget=6)
        b.e(f"s_branch L_epi_{shape}")
        return b

    def store_chunks(self, b, subs, scale_ops, extra):
        extra = list(extra)
        chunks = [(x, dh) for x in subs for dh in range(2)]
        R = S + 16
        WA = P + 8
        def reads(ci):
            o = []
            for kk in range(4):
                off = (ci % 2) * 4096 + kk * 1024
                if kk % 2 == 0: o.append(f"ds_read_b128 {vr(R+4*kk,4)}, v{STR} offset:{off}")
                else: o.append(f"ds_read2st64_b64 {vr(R+4*kk,4)}, v{E0} offset0:{off//512} offset1:{off//512}")
            return o
        def stores(ci):
            x, dh = chunks[ci]
            return [f"buffer_store_dwordx4 {vr(R+4*kk,4)}, v{OV+kk}, {sr(SRD_O,4)}, s{S_QOFF} offen offset:{x*256 + dh*128}{NT_O}" for kk in range(4)]
        nch = len(chunks)
        for ci in range(nch + 2):
            st = stores(ci - 2) if ci >= 2 else []
            if st: b.e(f"s_waitcnt lgkmcnt({8 if ci - 1 < nch else 0})")
            if ci < nch:
                x, dh = chunks[ci]
                n = 0
                for dbl in range(2):
                    db = 2*dh + dbl
                    for gq in range(4):
                        tb = P + 4 * (n % 2); X = S + 2 * n
                        for q in range(0, 4, 2):
                            for t in scale_ops(x, 16*db + 4*gq + q, tb + q): b.e(t)
                        b.e(f"v_cvt_pk_bf16_f32 v{X}, v{tb}, v{tb+1}")
                        b.e(f"v_cvt_pk_bf16_f32 v{X+1}, v{tb+2}, v{tb+3}")
                        if st and n % 2 == 0: b.e(st.pop(0))
                        elif extra and n % 4 == 1:
                            for t in extra.pop(0): b.e(t)
                        n += 1
            else:
                while extra:
                    for t in extra.pop(0): b.e(t)
            for t in st: b.e(t)
            if 1 <= ci <= nch:
                for kk in range(4):
                    off = ((ci - 1) % 2) * 4096 + kk * 1024
                    if kk % 2 == 0: b.e(f"ds_read_b128 {vr(R+4*kk,4)}, v{STR} offset:{off}")
                    else:
                        b.e(f"ds_read_b64 {vr(R+4*kk,2)}, v{STR} offset:{off+8}")
                        b.e(f"ds_read_b64 {vr(R+4*kk+2,2)}, v{STR} offset:{off}")
            if ci < nch:
                for n in range(8):
                    b.e(f"ds_write_b64 v{WA+n}, {vr(S+2*n,2)} offset:{(ci%2)*4096}")

    def epi_common(self, shape):
        J = S_J
        o = f"""s_and_b32 s{S_T0}, s{J+3}, 63
                v_and_b32 v6, 31, v{V_LANE}
                v_lshrrev_b32 v7, 5, v{V_LANE}
                v_lshlrev_b32 v{STW}, 7, v6
                v_bfe_u32 v{E0}, v{V_LANE}, 3, 1
                v_xor_b32 v7, v7, v{E0}
                v_lshl_add_u32 v{STW}, v7, 3, v{STW}
                v_and_b32 v6, 7, v{V_LANE}
                v_lshl_add_u32 v{STW}, v6, 4, v{STW}
                v_add_u32 v{STW}, s{S_STG}, v{STW}
                v_permlane32_swap_b32 v2, v3
                v_permlane32_swap_b32 v4, v5
                v_lshrrev_b32 v6, 3, v{V_LANE}
                v_and_b32 v7, 7, v{V_LANE}
                v_add_f32 v2, v2, v3
                v_add_f32 v4, v4, v5
                v_xor_b32 v{STR}, v6, v7
                v_lshlrev_b32 v{STR}, 4, v{STR}
                v_lshl_add_u32 v{STR}, v6, 7, v{STR}
                v_add_u32 v{STR}, s{S_STG}, v{STR}
                v_lshlrev_b32 v7, 4, v7
                v_lshl_add_u32 v7, v6, 12, v7
                v_mov_b32 v{E1}, s{S_OOB}""".split('\n')
        o = [t.strip() for t in o]
        for kk in range(4):
            o += [f"v_add_u32 v{E0}, {8*kk}, v6",
                  f"v_cmp_gt_u32 vcc, s{S_T0}, v{E0}",
                  f"v_add_u32 v{E0}, {kk*32768}, v7",
                  "s_nop 0",
                  f"v_cndmask_b32 v{OV+kk}, v{E1}, v{E0}, vcc"]
        if shape == 'A':
            o += ["v_rcp_f32 v2, v2", "v_rcp_f32 v4, v4"]
        else:
            o += [f"s_lshl_b32 s{S_T0}, s{S_PAIR}, 16",
                  f"s_lshl_b32 s{S_T0+1}, s{S_HP}, 14",
                  f"s_add_u32 s{S_T0}, s{S_T0}, s{S_T0+1}",
                  f"s_add_u32 s{S_T0}, s{S_T0}, 0x8000",
                  f"s_xor_b32 s{S_T0+1}, s{S_T0}, 0x10000",
                  f"v_lshlrev_b32 v6, 4, v{V_LANE}",
                  f"v_add_u32 v{XW}, s{S_T0}, v6",
                  f"v_add_u32 v{XR}, s{S_T0+1}, v6",
                  f"s_lshl_b32 s{S_T0}, s{S_W}, 9",
                  f"s_add_u32 s{S_T0}, s{S_T0}, 0x6000",
                  f"s_xor_b32 s{S_T0+1}, s{S_T0}, 0x400",
                  f"v_lshlrev_b32 v6, 3, v{V_LANE}",
                  f"v_add_u32 v{XM}, s{S_T0}, v6",
                  f"v_add_u32 v{XN}, s{S_T0+1}, v6"]
        return o

    def epilogue(self, shape):
        b = Block(f"epi_{shape}")
        b.e(f"L_epi_{shape}:")
        stamp(b)
        for n in range(8): b.e(f"v_xor_b32 v{P+8+n}, {n*16}, v{STW}")
        def ex(): return [self.pf_group('V', 0), self.pf_group('K', 2), self.pf_group('V', 1), self.pf_group('K', 3)]
        if shape == 'A':
            b.e("s_nop 0")
            self.store_chunks(b, (0, 1), lambda x, i, d: [f"v_pk_mul_f32 {vr(d,2)}, {vr(O+64*x+i,2)}, {vr(2+2*x,2)} op_sel_hi:[1,0]"], ex())
            b.e(f"s_mov_b32 s{S_WSEL}, 0")
            b.e("s_branch L_job")
        else:
            b.e(f"""s_cmp_eq_u32 s{S_PAIR}, 0
                    s_cbranch_scc0 L_epiB_1""")
            for own in range(2):
                oth = own ^ 1
                if own == 1: b.e("L_epiB_1:")
                b.e(f"v_mov_b32 v6, v{MC+oth}")
                b.e(f"v_mov_b32 v7, v{2+2*oth}")
                b.e("s_nop 7")
                b.e(f"ds_write_b64 v{XM}, v[6:7]")
                for i in range(16):
                    b.e(f"ds_write_b128 v{XW}, {vr(O+64*oth+4*i,4)} offset:{i*1024}")
                b.e("s_waitcnt lgkmcnt(0)")
                b.e("s_barrier")
                b.e(f"ds_read_b64 v[6:7], v{XN}")
                for i in range(16):
                    b.e(f"ds_read_b128 {vr(O+64*oth+4*i,4)}, v{XR} offset:{i*1024}")
                lo = 2 + 2*own
                b.e(f"""s_waitcnt lgkmcnt(15)
                        s_nop 0
                        s_waitcnt lgkmcnt(15)
                        v_max_f32 v{FO}, v{MC+own}, v6
                        v_sub_f32 v{FT}, v6, v{FO}
                        v_sub_f32 v{FO}, v{MC+own}, v{FO}
                        v_exp_f32 v{FT}, v{FT}
                        v_exp_f32 v{FO}, v{FO}
                        s_nop 0
                        v_mul_f32 v7, v7, v{FT}
                        v_fma_f32 v7, v{lo}, v{FO}, v7
                        v_rcp_f32 v7, v7
                        s_nop 0
                        v_mul_f32 v{FO}, v{FO}, v7
                        v_mul_f32 v{FT}, v{FT}, v7
                        s_waitcnt lgkmcnt(0)
                        s_barrier""")
                self.store_chunks(b, (own,), lambda x, i, d, own=own, oth=oth: [
                    f"v_pk_mul_f32 {vr(d,2)}, {vr(O+64*own+i,2)}, {vr(FO,2)} op_sel_hi:[1,0]",
                    f"v_pk_fma_f32 {vr(d,2)}, {vr(O+64*oth+i,2)}, {vr(FT,2)}, {vr(d,2)} op_sel_hi:[1,0,1]"], ex())
                b.e(f"s_mov_b32 s{S_WSEL}, 1")
                b.e("s_branch L_job")
        return b

    def rare(self, x, par):
        b = Block(f"rare_{x}_{par}")
        b.e(f"L_rare_{x}_{par}:")
        s0 = S + 16*x
        b.e("s_nop 15")
        b.e(f"v_max3_f32 v2, v{s0}, v{s0+1}, v{s0+2}")
        for i in range(3, 15, 2):
            b.e(f"v_max3_f32 v2, v2, v{s0+i}, v{s0+i+1}")
        b.e(f"v_max_f32 v2, v2, v{s0+15}")
        b.e("v_mov_b32 v3, v2")
        b.e("s_nop 1")
        b.e("v_permlane32_swap_b32 v2, v3")
        b.e("v_max_f32 v2, v2, v3")
        b.e(f"v_mul_f32 v2, s{S_C}, v2")
        b.e(f"v_max_f32 v2, v2, v{MC+x}")
        b.e(f"v_sub_f32 v3, v{MC+x}, v2")
        b.e("v_exp_f32 v3, v3")
        b.e(f"v_mov_b32 v{MC+x}, v2")
        b.e(f"v_mul_f32 v{L+2*x+par}, v3, v{L+2*x+(par^1)}")
        for i in range(64):
            b.e(f"v_mul_f32 v{O+64*x+i}, v3, v{O+64*x+i}")
        for k in range(8):
            b.e(f"v_fma_f32 v4, v{s0+2*k}, s{S_C}, -v{MC+x}")
            b.e(f"v_fma_f32 v5, v{s0+2*k+1}, s{S_C}, -v{MC+x}")
            b.e("v_exp_f32 v4, v4")
            b.e("v_exp_f32 v5, v5")
            b.e("s_nop 0")
            b.e(f"v_add_f32 v{L+2*x+par}, v{L+2*x+par}, v4")
            b.e(f"v_add_f32 v{L+2*x+par}, v{L+2*x+par}, v5")
            b.e(f"v_cvt_pk_bf16_f32 v{P+8*x+k}, v4, v5")
        b.e("s_nop 1")
        b.e(f"s_setpc_b64 {sr(S_RET,2)}")
        return b

    def prologue(self):
        b = Block("prologue")
        b.e(f"""s_cmp_ge_u32 s2, 256
                s_cbranch_scc1 L_end
                s_load_dwordx4 s[52:55], s[0:1], 0
                s_load_dwordx2 s[56:57], s[0:1], 16
                s_load_dwordx2 s[58:59], s[0:1], 32
                s_getpc_b64 {sr(S_TAB,2)}""")
        b.e("L_pc:")
        b.e(f"""s_add_u32 s{S_TAB}, s{S_TAB}, jobtab-L_pc
                s_addc_u32 s{S_TAB+1}, s{S_TAB+1}, 0
                v_lshrrev_b32 v1, 6, v0
                v_and_b32 v{V_LANE}, 63, v0
                v_readfirstlane_b32 s{S_W}, v1
                s_nop 3
                s_lshr_b32 s{S_PAIR}, s{S_W}, 1
                s_and_b32 s{S_HP}, s{S_W}, 1
                s_lshl_b32 s3, s2, 7
                s_lshl_b32 s4, s{S_PAIR}, 6
                s_add_u32 s3, s3, s4
                s_add_u32 s{S_TAB}, s{S_TAB}, s3
                s_addc_u32 s{S_TAB+1}, s{S_TAB+1}, 0
                s_load_dwordx4 {sr(S_N,4)}, {sr(S_TAB,2)}, 0
                s_load_dwordx8 {sr(S_JT,8)}, {sr(S_TAB,2)}, 16
                s_mov_b32 s{S_C}, {C_SCALE:#x}
                s_mov_b32 s{S_THR}, {THR:#x}
                s_mov_b32 s{S_OOB}, 0x80000000
                s_mov_b32 s{S_TRASH}, 0x3c000
                s_lshl_b32 s{S_STG}, s{S_PAIR}, 16
                s_lshl_b32 s3, s{S_HP}, 13
                s_add_u32 s{S_STG}, s{S_STG}, s3
                s_add_u32 s{S_STG}, s{S_STG}, 0xc000
                s_lshl_b32 s{S_MBA}, s{S_W}, 11
                s_lshl_b32 s{S_MBB}, s{S_PAIR}, 16
                s_lshl_b32 s3, s{S_HP}, 12
                s_add_u32 s{S_MBB}, s{S_MBB}, s3""")
        b.e(f"""v_lshrrev_b32 v5, 4, v{V_LANE}
                v_and_b32 v6, 15, v{V_LANE}
                v_xor_b32 v7, v6, v5
                v_lshlrev_b32 v7, 4, v7
                v_lshl_add_u32 v2, v5, 10, v7
                v_lshl_add_u32 v{DQ}, v5, 12, v7
                v_xor_b32 v{DQ+1}, 64, v{DQ}
                v_xor_b32 v{DQ+2}, 0x80, v{DQ}
                v_xor_b32 v{DQ+3}, 0xc0, v{DQ}
                v_lshrrev_b32 v4, 1, v{V_LANE}
                v_and_b32 v{V_WARM}, 1, v{V_LANE}
                v_lshlrev_b32 v{V_WARM}, 7, v{V_WARM}
                v_lshl_add_u32 v{V_WARM}, v4, 10, v{V_WARM}
                v_lshlrev_b32 v7, 2, v5
                v_xor_b32 v7, v6, v7
                v_lshlrev_b32 v7, 4, v7
                v_lshl_add_u32 v3, v5, 10, v7""")
        for sh in 'AB':
            b.e(f"s_lshl_b32 s5, s{S_W}, 1" if sh == 'A' else f"s_lshl_b32 s5, s{S_HP}, 2")
            for i in range(G[sh]):
                b.e(f"""s_add_u32 s3, s5, {i}
                        s_and_b32 s4, s3, 3
                        s_lshl_b32 s4, s4, 6
                        s_lshl_b32 s3, s3, 12
                        s_sub_u32 s3, s3, {i*1024}
                        v_xor_b32 v{DKR[sh][i]}, s4, v2
                        v_add_u32 v{DKR[sh][i]}, s3, v{DKR[sh][i]}
                        v_add_u32 v{DVR[sh][i]}, s3, v3""")
        b.e(f"""s_waitcnt lgkmcnt(0)
                s_mov_b32 s{SRD_Q}, s52
                s_mov_b32 s{SRD_Q+1}, s53
                s_mov_b32 s{SRD_Q+2}, {QBYTES}
                s_mov_b32 s{SRD_Q+3}, 0x00020000
                s_mov_b32 s{SRD_K}, s54
                s_mov_b32 s{SRD_K+1}, s55
                s_mov_b32 s{SRD_K+2}, {KBYTES}
                s_mov_b32 s{SRD_K+3}, 0x00020000
                s_mov_b32 s{SRD_V}, s56
                s_mov_b32 s{SRD_V+1}, s57
                s_mov_b32 s{SRD_V+2}, {KBYTES}
                s_mov_b32 s{SRD_V+3}, 0x00020000
                s_mov_b32 s{SRD_O}, s58
                s_mov_b32 s{SRD_O+1}, s59
                s_mov_b32 s{SRD_O+2}, {QBYTES}
                s_mov_b32 s{SRD_O+3}, 0x00020000""")
        if STAMPS:
            b.e(f"""s_load_dwordx2 s[84:85], s[0:1], 48
                    s_waitcnt lgkmcnt(0)
                    s_mov_b32 s86, 0x1000000
                    s_mov_b32 s87, 0x00020000
                    s_lshl_b32 s82, s2, 2
                    s_add_u32 s82, s82, s{S_W}
                    s_lshl_b32 s82, s82, 8""")
            stamp(b, True)
            stamp(b)
        b.e(f"""s_mov_b32 s{S_J+3}, 0
                s_mov_b32 s{S_FIRST}, 1""")
        for t in self.pfsetup(): b.e(t)
        for t in self.pf_group('K', 0): b.e(t)
        self.qstate(b)
        b.e(f"""s_and_b32 s{S_T0}, s{S_N+3}, 0x600
                s_cmp_eq_u32 s{S_T0}, 0x200
                s_cbranch_scc1 L_noq""")
        b.e(f"s_call_b64 {sr(S_RET,2)}, L_qrem_0")
        b.e("L_noq:")
        for i in range(4): b.e(f"v_accvgpr_write_b32 a{AZ+i}, 0")
        b.e(f"""v_mov_b32 v{V_M16}, 0xffff
                v_and_b32 v6, 31, v{V_LANE}
                v_lshrrev_b32 v2, 5, v{V_LANE}
                v_lshlrev_b32 v3, 2, v2
                v_sub_u32 v3, v3, v6
                v_mov_b32 v4, {NEGBIG:#x}""")
        for r in range(16):
            kk = 8*(r//4) + r % 4
            b.e(f"v_cmp_lt_i32 vcc, {-kk}, v3")
            b.e("s_nop 1")
            b.e(f"v_cndmask_b32 v{MASK+r}, 0, v4, vcc")
        b.e("""v_and_b32 v5, 15, v6
               v_xor_b32 v5, v5, v2
               v_lshlrev_b32 v5, 4, v5
               v_lshl_add_u32 v5, v6, 8, v5""")
        for s in range(8):
            b.e(f"v_xor_b32 v{KADDR+s}, {32*s}, v5")
        b.e(f"""v_bfe_u32 v5, v{V_LANE}, 2, 2
                v_lshl_add_u32 v6, v2, 2, v5
                v_lshlrev_b32 v6, 8, v6
                v_lshl_add_u32 v6, v5, 6, v6
                v_bfe_u32 v7, v{V_LANE}, 4, 1
                v_lshl_add_u32 v6, v7, 5, v6
                v_and_b32 v7, 3, v{V_LANE}
                v_lshl_add_u32 v6, v7, 3, v6""")
        for db in range(4):
            b.e(f"v_xor_b32 v{VADDR+db}, {64*db}, v6")
        b.e(f"""s_and_b32 s{S_T0}, s{S_N+3}, 0x600
                s_cmp_eq_u32 s{S_T0}, 0
                s_cselect_b32 s{S_WSEL}, 2, 3""")
        return b

    def qstate(self, b):
        N = S_N
        b.e(f"""s_lshl_b32 s{S_T0}, s{S_HP}, 9
                s_add_u32 s{S_QSO}, s{N}, s{S_T0}
                s_lshl_b32 s{S_T0}, s{S_PAIR}, 8
                s_add_u32 s{S_T0+1}, s{S_QSO}, s{S_T0}
                s_lshl_b32 s{S_T0}, s{S_W}, 13
                s_add_u32 s{S_T0+2}, s{S_T0}, 0x20000
                s_add_u32 s{S_QM02}, s{S_T0}, 0x10000
                s_lshl_b32 s{S_T0}, s{S_HP}, 14
                s_add_u32 s{S_T0+5}, s{S_T0}, 0x20000
                s_add_u32 s{S_T0+6}, s{S_T0}, 0x22000
                s_lshl_b32 s{S_T0}, s{S_PAIR}, 13
                s_add_u32 s{S_T0+7}, s{S_T0+5}, s{S_T0}
                s_add_u32 s{S_QSO2}, s{S_QSO}, 256
                s_bitcmp1_b32 s{N+3}, 10
                s_cselect_b32 s{S_QSO}, s{S_T0+1}, s{S_QSO}
                s_cselect_b32 s{S_QST}, s{S_T0+5}, s{S_T0+2}
                s_cselect_b32 s{S_QST2}, s{S_T0+6}, s{S_QM02}
                s_cselect_b32 s{S_QM0}, s{S_T0+7}, s{S_T0+2}
                s_cselect_b32 s{S_QMADJ}, s{S_T0+7}, s{S_QM02}
                s_cselect_b32 s{S_QCNT}, 9, 17
                s_cselect_b32 s{S_QADJV}, 0, {(256 - 131072) & 0xffffffff:#x}
                s_cselect_b32 s{S_Q2}, 0, 1
                s_lshr_b32 s{S_T0}, s{S_J+3}, 10
                s_and_b32 s{S_Q2}, s{S_Q2}, s{S_T0}
                s_cmp_eq_u32 s{S_Q2}, 1
                s_cselect_b32 s{S_QCNT}, 9, s{S_QCNT}
                s_cselect_b32 s{S_QADJV}, 0, s{S_QADJV}
                s_cselect_b32 s{S_QMADJ}, s{S_QM0}, s{S_QMADJ}
                s_bitcmp1_b32 s{N+3}, 11
                s_cselect_b32 s{S_QCNT}, s{S_QCNT}, 0
                s_cselect_b32 s{S_Q2}, s{S_Q2}, 0""")

    def qrem(self):
        b = Block("qrem")
        for i in range(4):
            b.e(f"L_qrem_{i}:")
            for t in Q_POST[2:]: b.e(t)
            b.e(f"""s_cmp_gt_i32 s{S_QCNT}, 0
                    s_cbranch_scc0 L_qrem_done
                    s_mov_b32 s{S_QUSE}, s{S_QSO}
                    s_mov_b32 m0, s{S_QM0}""")
            b.e(Q_POST[0])
            b.e(dma_q(i))
            b.e(Q_POST[1])
        b.e("s_branch L_qrem_0")
        b.e("L_qrem_done:")
        b.e(f"""s_cmp_eq_u32 s{S_Q2}, 0
                s_cbranch_scc1 L_qrem_ret
                s_mov_b32 s{S_Q2}, 0
                s_mov_b32 s{S_QSO}, s{S_QSO2}
                s_mov_b32 s{S_QM0}, s{S_QM02}
                s_mov_b32 s{S_QMADJ}, s{S_QM02}
                s_mov_b32 s{S_QCNT}, 9
                s_branch L_qrem_0
                L_qrem_ret:""")
        b.e(f"s_setpc_b64 {sr(S_RET,2)}")
        return b

    def jobstart(self):
        b = Block("jobstart")
        J = S_J
        b.e("L_job:")
        b.e(f"""s_bitcmp1_b32 s{S_N+3}, 11
                s_cbranch_scc0 L_end""")
        for i in range(8):
            b.e(f"v_and_or_b32 v{P+i}, v{KADDR+i}, v{V_M16}, s{S_QST}")
            b.e(f"v_and_or_b32 v{P+8+i}, v{KADDR+i}, v{V_M16}, s{S_QST2}")
        b.e(f"""s_mov_b64 {sr(J,2)}, {sr(S_N,2)}
                s_mov_b64 {sr(J+2,2)}, {sr(S_N+2,2)}
                s_mov_b64 {sr(S_N,2)}, {sr(S_JT,2)}
                s_mov_b64 {sr(S_N+2,2)}, {sr(S_JT+2,2)}
                s_mov_b64 {sr(S_JT,2)}, {sr(S_JT+4,2)}
                s_mov_b64 {sr(S_JT+2,2)}, {sr(S_JT+6,2)}
                s_mov_b64 {sr(S_JT+6,2)}, 0
                s_lshl_b32 s{S_T0}, s{S_HP}, 9
                s_add_u32 s{S_QOFF}, s{J}, s{S_T0}""")
        for i in range(8):
            b.e(f"v_and_or_b32 v{KADDR+i}, v{KADDR+i}, v{V_M16}, s{S_RING}")
        for i in range(4):
            b.e(f"v_and_or_b32 v{VADDR+i}, v{VADDR+i}, v{V_M16}, s{S_RING}")
        b.e(f"""s_bitcmp1_b32 s{J+3}, 8
                s_cselect_b32 s{S_T0}, -1, 0""")
        for r in range(16):
            b.e(f"v_and_b32 v{MJ+r}, s{S_T0}, v{MASK+r}")
        b.e(f"""s_sub_u32 s{S_REM}, s{J+2}, 2
                s_sub_u32 s{S_VOFF}, s{J+1}, 0x10000
                s_cmp_ge_u32 s{S_WSEL}, 2
                s_cbranch_scc1 L_js_first""")
        self.qstate(b)
        b.e(f"""s_cmp_eq_u32 s{S_WSEL}, 0
                s_cbranch_scc1 L_js_w0
                s_waitcnt vmcnt(18)
                L_js_w0:
                s_waitcnt vmcnt(26)
                s_barrier""")
        stamp(b)
        self.qreads(b, 0)
        self.qreads(b, 1)
        b.e("s_branch L_js_go")
        b.e("L_js_first:")
        b.e(f"""s_cmp_eq_u32 s{S_WSEL}, 2
                s_cbranch_scc1 L_js_w2
                s_waitcnt vmcnt(0)
                L_js_w2:
                s_waitcnt vmcnt(8)
                s_barrier""")
        stamp(b)
        self.qreads(b, 0)
        self.qreads(b, 1)
        for kind, u in (('K', 1), ('V', 0)):
            for t in self.pf_group(kind, u, S_J): b.e(t)
        b.e(f"s_call_b64 {sr(S_RET,2)}, L_qrem_0")
        self.qstate(b)
        b.e("L_js_go:")
        stamp(b)
        b.e(f"""s_bitcmp1_b32 s{J+3}, 10
                s_cbranch_scc1 L_pre_B""")
        return b

    def pre(self, shape):
        J = S_J
        b = Block(f"pre_{shape}")
        b.e(f"L_pre_{shape}:")
        b.e(f"s_bitcmp1_b32 s{J+3}, 9")
        b.e(f"s_cbranch_scc0 L_head_{shape}_0")
        return b

    def build(self, wg):
        self.add(self.prologue())
        self.add(self.jobstart())
        for shape in 'AB':
            self.add(self.pre(shape))
            self.add(self.idle_step(shape))
            self.add(self.head(shape, 1))
            self.add(self.head(shape, 0))
            al = Block(f"align_{shape}"); al.e(".p2align 6"); self.add(al)
            for ph in range(4): self.add(self.step(shape, ph))
            for ph in range(4): self.add(self.tail(shape, ph))
            self.add(self.epilogue(shape))
        self.add(self.qrem())
        for x in range(2):
            for par in range(2): self.add(self.rare(x, par))
        self.add(self.stubs)
        end = Block("end"); end.e("L_end:")
        if STAMPS:
            end.e("s_cmp_ge_u32 s2, 256"); end.e("s_cbranch_scc1 L_end2")
            stamp(end); end.e("s_waitcnt vmcnt(0)"); stamp(end); stamp(end, True)
            end.e("L_end2:")
        end.e("s_endpgm"); self.add(end)
        B = self.blocks
        paths = []
        for sh in 'AB':
            lp = [f"loop_{sh}_{p}" for p in range(4)]
            paths.append(["prologue", "jobstart", f"pre_{sh}", f"head_{sh}_0"] + lp + lp)
            paths.append([f"pre_{sh}", f"idle_{sh}", f"head_{sh}_1"] + lp[1:] + lp)
            for ph in range(4):
                paths.append([lp[(ph-2) % 4], lp[(ph-1) % 4], f"tail_{sh}_{ph}", f"epi_{sh}", "jobstart"])
            paths.append([f"head_{sh}_0", f"tail_{sh}_0", f"epi_{sh}"])
            paths.append([f"head_{sh}_1", f"tail_{sh}_1", f"epi_{sh}"])
        paths.append(["qrem"])
        for x in range(2):
            for par in range(2): paths.append([f"rare_{x}_{par}", "loop_A_0"])
        nprob = 0
        for p in paths:
            for skip in (False, True):
                seq = sum((B[n].ins for n in p), [])
                if skip: seq = prune_forward_skips(seq)
                for pr in check_hazards(seq, "+".join(p)):
                    print("HAZARD", pr, file=sys.stderr); nprob += 1
        assert nprob == 0
        txt = ""
        for n in self.order: txt += B[n].text()
        return txt

def prune_forward_skips(seq):
    out = []; i = 0
    labels = {ins.text[:-1]: k for k, ins in enumerate(seq) if ins.kind == 'label' and ins.text.endswith(':')}
    while i < len(seq):
        ins = seq[i]; out.append(ins)
        if ins.op.startswith('s_cbranch_scc'):
            tgt = ins.ops[0]
            if tgt in labels and labels[tgt] > i and not tgt.startswith(('L_tail', 'L_loop', 'L_head', 'L_pre', 'L_end', 'L_epi')):
                i = labels[tgt]; continue
        i += 1
    return out

def table(wg):
    CU = sched.CU
    words = []
    for w in range(256):
        ent = [[], []]
        assert len(wg[w]) <= 3
        for (seq, kvh, kind, b, N) in wg[w]:
            s0, Ls = CU[seq], CU[seq+1] - CU[seq]
            def q(bb): return ((s0 + 32*bb) * 16 + kvh * 4) * 256
            def kv(t): return ((s0 + 32*t) * 4 + kvh) * 256
            def nv(bb): return max(0, min(32, Ls - 32*bb))
            if kind == 'A':
                ent[0] += [q(b), kv(b+1), N, nv(b) | 1 << 8 | 1 << 9 | 1 << 11]
                ent[1] += [q(b+1), kv(b+1), N, nv(b+1) | 1 << 8 | 1 << 11]
            else:
                n = b + 1
                assert n >= 2 and N == (n + 1) // 2
                n0 = n - N
                d = N - n0
                ent[0] += [q(b), kv(b), N, nv(b) | 1 << 8 | 1 << 10 | 1 << 11]
                ent[1] += [q(b), kv(n0 - 1 + d), N, nv(b) | d << 9 | 1 << 10 | 1 << 11]
        for p in range(2):
            words += ent[p] + [0] * (16 - len(ent[p]))
    return words

THRB, OVH = 32, 4.0
def main(out):
    wg, st = sched.build(THRB, OVH)
    g = Gen()
    body = g.build(wg)
    hdr = open(f"cdna_kernels/{NAME}.s.ref").read().split("; Override launch")[0]
    s = hdr
    s += f"; @launch grid=(256,1,1) block=(256,1,1) lds={LDS_BYTES}\n"
    s += f""".amdgcn_target "amdgcn-amd-amdhsa--gfx950"
.text
.globl {NAME}_kernel
.p2align 8
.type {NAME}_kernel,@function
{NAME}_kernel:
"""
    s += body
    s += ".p2align 6\n.type jobtab,@object\njobtab:\n"
    w = table(wg)
    for i in range(0, len(w), 8):
        s += ".long " + ", ".join(f"{x:#x}" for x in w[i:i+8]) + "\n"
    s += f".size jobtab, {len(w)*4}\n"
    s += f""".section .rodata,"a"
.p2align 6
.amdhsa_kernel {NAME}_kernel
  .amdhsa_next_free_vgpr 392
  .amdhsa_next_free_sgpr 102
  .amdhsa_accum_offset 256
  .amdhsa_group_segment_fixed_size 0
  .amdhsa_kernarg_size 56
  .amdhsa_user_sgpr_count 2
  .amdhsa_user_sgpr_kernarg_segment_ptr 1
  .amdhsa_system_sgpr_workgroup_id_x 1
.end_amdhsa_kernel
"""
    open(out, "w").write(s)

if __name__ == "__main__":
    args = [a for a in sys.argv[1:] if not a.startswith('-')]
    if '-stamps' in sys.argv: STAMPS = True
    for a in sys.argv[1:]:
        if a.startswith('-D'):
            k, v = a[2:].split('=')
            globals()[k] = (' nt' if v == '1' else '') if k.startswith('NT_') else eval(v)
    main(args[0] if args else f"cdna_kernels/{NAME}.s")
```

```python
import sys, struct, math
from asmlib import *
import sched

NAME = "standalone__ragged_sequences_varlen_flash_attn__ragged"
T_TOK = 7180
QBYTES = T_TOK * 16 * 256
KBYTES = T_TOK * 4 * 256
def f32(x): return struct.unpack('<I', struct.pack('<f', x))[0]
C_SCALE = f32(math.log2(math.e) / math.sqrt(128.0))
THR = f32(2.0 ** 40)
NEGBIG = f32(-1.0e30)
LDS_BYTES = 163840
NT_Q = ' nt'; NT_KV = ''; NT_O = ' nt'
WARM = False
CODEWARM = True
NT_PF = ' nt'
X_NOST = False; X_NOSTG = False; X_NOPF = False; X_NOBAR = False; X_NOVM = False; X_NODMA = False; X_NOLDS = False; X_NOSALU = False

DKR = {'A': [0, 1], 'B': [48, 49, 50, 51]}
DVR = {'A': [78, 79], 'B': [52, 53, 54, 55]}
DQ = 8
V_WARM = 12
V_DUMMY = 13
V_M16 = 14; V_LANE = 15
MASK = 16; MJ = 32
VADDR = 56; KADDR = 60
MC = 68; L = 70; TT = 74
P = 80; S = 96; O = 128
AQ = 0; AK = 64; AV = 96; AZ = 128
OV = MJ; STW = MJ + 4; STR = MJ + 5; XW = MJ + 6; XR = MJ + 7; XM = MJ + 8; XN = MJ + 9; E0 = MJ + 10; E1 = MJ + 11; FO = MJ + 12; FT = MJ + 14
S_FIRST, S_WSEL, S_Q2, S_QSO2, S_QM02 = 3, 4, 5, 6, 7
SRD_Q, SRD_K, SRD_V, SRD_O = 8, 12, 16, 20
S_C, S_THR, S_OOB, S_W, S_PAIR, S_HP = 24, 25, 26, 27, 28, 29
S_RET = 30; S_TAB = 32; S_J = 36
S_QOFF, S_VOFF, S_REM, S_KUSE, S_VUSE, S_KT, S_QCNT, S_QSO, S_QM0, S_QUSE = range(40, 50)
S_T0 = 50
S_M0K = 60; S_M0V = 64; S_RING = 68; S_QADJ = 69; S_QADJV = 70; S_QMADJ = 71
S_N = 72; S_TRASH = 76; S_QST = 77; S_STG = 78; S_QST2 = 79
S_JT = 88; S_MBA = 96; S_MBB = 97

def vr(b, n): return f"v[{b}:{b+n-1}]"
def ar(b, n): return f"a[{b}:{b+n-1}]"
def sr(b, n): return f"s[{b}:{b+n-1}]"
G = {'A': 2, 'B': 4}

def mfma_q(x, s, first_c):
    c = first_c if s == 0 else vr(S + 16*x, 16)
    return f"v_mfma_f32_32x32x16_bf16 {vr(S+16*x,16)}, {ar(AK+4*s,4)}, {ar(AQ+32*x+4*s,4)}, {c}"
def mfma_v(x, j):
    u, db = j // 4, j % 4
    o = vr(O + 64*x + 16*db, 16)
    return f"v_mfma_f32_32x32x16_bf16 {o}, {ar(AV+4*j,4)}, {vr(P+8*x+4*u,4)}, {o}"
def mfma_z(i):
    return f"v_mfma_f32_32x32x16_bf16 {vr(O+16*i,16)}, {ar(AZ,4)}, {ar(AZ,4)}, 0"
def kread(s, slot):
    return f"ds_read_b128 {ar(AK+4*s,4)}, v{KADDR+s} offset:{slot*8192}"
def vread(j, e, slot):
    u, db = j // 4, j % 4
    return f"ds_read_b64_tr_b16 {ar(AV+4*j+2*e,2)}, v{VADDR+db} offset:{32768 + slot*8192 + (16*u+8*e)*256}"
def dma_k(sh, i, suse=S_KUSE):
    return f"buffer_load_dwordx4 v{DKR[sh][i]}, {sr(SRD_K,4)}, s{suse} offen offset:{i*1024}{NT_KV if suse == S_KUSE else NT_PF} lds"
def dma_v(sh, i, suse=S_VUSE):
    return f"buffer_load_dwordx4 v{DVR[sh][i]}, {sr(SRD_V,4)}, s{suse} offen offset:{i*1024}{NT_KV if suse == S_VUSE else NT_PF} lds"
def dma_q(i=0):
    return f"buffer_load_dwordx4 v{DQ+i}, {sr(SRD_Q,4)}, s{S_QUSE} offen{NT_Q} lds"
Q_PRE = [f"s_cmp_gt_i32 s{S_QCNT}, 0",
         f"s_cselect_b32 s{S_QUSE}, s{S_QSO}, s{S_OOB}",
         f"s_cselect_b32 m0, s{S_QM0}, s{S_TRASH}"]
Q_POST = [f"s_add_u32 s{S_QSO}, s{S_QSO}, 0x4000",
          f"s_add_u32 s{S_QM0}, s{S_QM0}, 0x400",
          f"s_sub_u32 s{S_QCNT}, s{S_QCNT}, 1",
          f"s_cmp_eq_u32 s{S_QCNT}, 8",
          f"s_cselect_b32 s{S_QADJ}, s{S_QADJV}, 0",
          f"s_cselect_b32 s{S_QM0}, s{S_QMADJ}, s{S_QM0}",
          f"s_add_u32 s{S_QSO}, s{S_QSO}, s{S_QADJ}"]
def opF(x, e): return f"v_fma_f32 v{TT+e%4}, v{S+16*x+e}, s{S_C}, -v{MC+x}"
def opE(x, e): return f"v_exp_f32 v{TT+e%4}, v{TT+e%4}"
def opA(x, e, par):
    src = L + 2*x + (par ^ 1) if e == 0 else L + 2*x + par
    return f"v_add_f32 v{L+2*x+par}, v{src}, v{TT+e%4}"
def opC(x, k): return f"v_cvt_pk_bf16_f32 v{P+8*x+k}, v{TT+(2*k)%4}, v{TT+(2*k+1)%4}"

STAMPS = False
def stamp(b, real=False):
    if not STAMPS: return
    b.e(f"""{'s_memrealtime' if real else 's_memtime'} s[80:81]
            s_waitcnt lgkmcnt(0)
            v_mov_b32 v6, s80
            v_mov_b32 v7, s82
            s_add_u32 s82, s82, 4
            buffer_store_dword v6, v7, s[84:87], 0 offen""")

def cost(t):
    op = t.split()[0]
    if op.endswith(':'): return 0
    if op.startswith('v_exp') or op.startswith('v_rcp') or op.startswith('buffer'): return 2
    if op == 's_nop': return int(t.split()[1]) + 1
    return 1

def weave(b, mfmas, mem, valu, budget=6, mem_per_gap=2):
    mem = list(mem); valu = list(valu)
    for m in mfmas:
        b.e(m)
        used = 0
        for _ in range(mem_per_gap):
            if mem:
                it = mem.pop(0)
                for t in it: b.e(t); used += cost(t)
        while valu and used + cost(valu[0]) <= budget:
            t = valu.pop(0); b.e(t); used += cost(t)
    for it in mem:
        for t in it: b.e(t)
    for t in valu: b.e(t)

class Gen:
    def __init__(self):
        self.blocks = {}
        self.order = []
        self.stubs = Block("stubs")
        self.nstub = 0
    def add(self, b):
        self.blocks[b.name] = b; self.order.append(b.name); return b
    def uid(self):
        self.nstub += 1; return self.nstub

    def check_site(self, b, x, par):
        k = self.uid()
        b.e(f"s_cbranch_vccnz L_stub{k}")
        b.e(f"L_ret{k}:")
        self.stubs.e(f"L_stub{k}:")
        self.stubs.e(f"s_call_b64 {sr(S_RET,2)}, L_rare_{x}_{par}")
        self.stubs.e(f"s_branch L_ret{k}")

    def plan_mem(self, g):
        cap = [1 if i % 2 == 0 else 2 for i in range(32)]
        cap[15] = 0; cap[31] = 0
        place = {i: [] for i in range(32)}
        kd = [17, 19, 21, 23] if g == 4 else [19, 23]
        vd = [7, 9, 11, 13] if g == 4 else [9, 13]
        for i, gp in enumerate(kd): place[gp].append(('KD', i)); cap[gp] -= 2
        for i, gp in enumerate(vd): place[gp].append(('VD', i)); cap[gp] -= 2
        place[27].append(('QD',)); cap[27] -= 2
        items = [(16 + s, 30, ('K', s)) for s in range(8)]
        for j in range(8):
            for e in range(2): items.append((24 + j, 38 if j < 4 else 42, ('V', j, e)))
        pend = list(items)
        for t in range(16, 48):
            gp = t % 32
            while cap[gp] > 0:
                c = [it for it in pend if it[0] <= t]
                if not c: break
                it = min(c, key=lambda i: (i[1], i[0]))
                assert it[1] >= t, ("deadline miss", it, t)
                pend.remove(it); cap[gp] -= 1
                place[gp].append(it[2])
        assert not pend
        for gp in place:
            place[gp].sort(key=lambda it: 0 if it[0] in ('K', 'V') else 1)
        return place

    def sm_ops(self, gap, ph):
        ops = []
        s_par = ph % 2
        def elem(idx):
            if 0 <= idx < 16: return (1, idx, s_par, 'b0')
            if 16 <= idx < 32: return (0, idx - 16, s_par ^ 1, 'a1')
            if 32 <= idx < 48: return (1, idx - 32, s_par ^ 1, 'b1')
            return None
        x, e, par, tag = elem(gap + 1); ops.append((tag, opA(x, e, par)))
        if gap % 2 == 0:
            x, e, par, tag = elem(gap); ops.append((tag, opC(x, e // 2)))
        x, e, par, tag = elem(gap + 3); ops.append((tag, opF(x, e)))
        x, e, par, tag = elem(gap + 2); ops.append((tag, opE(x, e)))
        return ops

    def sm_stream(self, gaps, ph, tags):
        out = []
        for gp in gaps:
            ops = [t for tag, t in self.sm_ops(gp, ph) if tag in tags]
            ex = [t for t in ops if t.startswith('v_exp')]
            ot = [t for t in ops if not t.startswith('v_exp')]
            if ex and ot: out += ex + ot
            elif ex: out += ex + ["s_nop 0"]
            else: out += (["s_nop 0"] if ot else []) + ot
        return out

    def step(self, shape, ph):
        g = G[shape]
        b = Block(f"loop_{shape}_{ph}")
        b.e(f"L_loop_{shape}_{ph}:")
        place = self.plan_mem(g)
        free = {i: [] for i in range(32)}
        seq = []
        for gp in range(32):
            for it in place[gp]:
                if it[0] in ('K', 'V'): seq.append((gp, it))
        def count_after(need_items, wait_gap):
            lin = [(gp - 32, it) for gp, it in seq] + [(gp, it) for gp, it in seq]
            lin = [(t, it) for t, it in lin if t < wait_gap]
            last = max(max(i for i, (t, it) in enumerate(lin) if it == n) for n in need_items)
            return len(lin) - 1 - last
        wk = count_after([('K', s) for s in range(8)], 31)
        free[31].append(f"s_waitcnt lgkmcnt({wk})")
        wv0 = count_after([('V', j, e) for j in range(4) for e in range(2)], 7)
        free[7].append(f"s_waitcnt lgkmcnt({wv0})")
        wv1 = count_after([('V', j, e) for j in range(4, 8) for e in range(2)], 11)
        free[11].append(f"s_waitcnt lgkmcnt({wv1})")
        assert max(wk, wv0, wv1) <= 15
        if not X_NOVM: free[15].append(f"s_waitcnt vmcnt({4*g+2})")
        if not X_NOBAR: free[16].append("s_barrier")
        free[20].append(Q_PRE[0]); free[22].append(Q_PRE[1]); free[24].append(Q_PRE[2])
        free[28].append(Q_POST[0]); free[29].append(Q_POST[1])
        free[5].append(Q_POST[2]); free[6].append(Q_POST[3]); free[8].append(Q_POST[4]); free[9].append(Q_POST[5]); free[19].append(Q_POST[6])
        free[0].append(f"s_cmp_gt_i32 s{S_REM}, 0")
        free[1].append(f"s_cselect_b32 s{S_VUSE}, s{S_VOFF}, s{S_OOB}")
        free[2].append(f"s_cselect_b32 m0, s{S_M0V + (ph+3)%4}, s{S_TRASH}")
        free[3].append(f"s_sub_u32 s{S_KT}, s{S_VOFF}, 0x10000")
        free[4].append(f"s_sub_u32 s{S_VOFF}, s{S_VOFF}, 0x8000")
        free[10].append(f"s_cmp_gt_i32 s{S_REM}, 2")
        free[12].append(f"s_cselect_b32 s{S_KUSE}, s{S_KT}, s{S_OOB}")
        free[14].append(f"s_cselect_b32 m0, s{S_M0K + (ph+5)%4}, s{S_TRASH}")
        free[18].append(f"s_sub_u32 s{S_REM}, s{S_REM}, 1")
        free[30].append(f"s_cmp_ge_i32 s{S_REM}, -1")
        for gp in range(32):
            if gp < 8: b.e(mfma_q(0, gp, "0"))
            elif gp < 16: b.e(mfma_v(0, gp - 8))
            elif gp < 24: b.e(mfma_q(1, gp - 16, "0"))
            else: b.e(mfma_v(1, gp - 24))
            for t in free[gp]: b.e(t)
            for it in place[gp]:
                if X_NODMA and it[0] in ('KD', 'VD', 'QD'): continue
                if X_NOLDS and it[0] in ('K', 'V'): continue
                if it[0] == 'K': b.e(kread(it[1], (ph + 2) % 4 if gp >= 16 else (ph + 1) % 4))
                elif it[0] == 'V': b.e(vread(it[1], it[2], (ph + 1) % 4 if gp >= 16 else ph % 4))
                elif it[0] == 'KD': b.e(dma_k(shape, it[1]))
                elif it[0] == 'VD': b.e(dma_v(shape, it[1]))
                elif it[0] == 'QD': b.e(dma_q(ph))
            ops = self.sm_ops(gp, ph)
            if gp == 15:
                b.e(f"v_cmp_nge_f32 vcc, s{S_THR}, v{L+2*1+ph%2}")
            if gp == 31:
                b.e(f"v_cmp_nge_f32 vcc, s{S_THR}, v{L+2*0+(ph+1)%2}")
            for tag, t in ops: b.e(t)
            if gp == 15: self.check_site(b, 1, ph % 2)
            if gp == 31: self.check_site(b, 0, (ph + 1) % 2)
        b.e(f"s_cbranch_scc0 L_tail_{shape}_{(ph+1)%4}")
        if ph == 3: b.e(f"s_branch L_loop_{shape}_0")
        return b

    def dma_v_part(self, b, ph, shape):
        for t in Q_POST[2:]: b.e(t)
        b.e(f"""s_cmp_gt_i32 s{S_REM}, 0
                s_cselect_b32 s{S_VUSE}, s{S_VOFF}, s{S_OOB}
                s_cselect_b32 m0, s{S_M0V + (ph+3)%4}, s{S_TRASH}
                s_sub_u32 s{S_KT}, s{S_VOFF}, 0x10000
                s_sub_u32 s{S_VOFF}, s{S_VOFF}, 0x8000""")
        for i in range(G[shape]): b.e(dma_v(shape, i))
    def dma_k_part(self, ph, shape):
        return [f"s_cmp_gt_i32 s{S_REM}, 2",
                f"s_cselect_b32 s{S_KUSE}, s{S_KT}, s{S_OOB}",
                f"s_cselect_b32 m0, s{S_M0K + (ph+5)%4}, s{S_TRASH}",
                f"s_sub_u32 s{S_REM}, s{S_REM}, 1"] + [dma_k(shape, i) for i in range(G[shape])]
    def dma_q_part(self, dummy=False):
        if dummy:
            return [f"s_mov_b32 m0, s{S_TRASH}", f"s_mov_b32 s{S_QUSE}, s{S_OOB}", f"s_add_u32 s{S_QCNT}, s{S_QCNT}, 1", dma_q()]
        return Q_PRE + [Q_POST[0], dma_q(0), Q_POST[1]]

    def warm(self):
        N = S_N
        k = self.uid()
        o = [f"s_bitcmp1_b32 s{N+3}, 11", f"s_cbranch_scc0 L_wm{k}",
             f"s_cmp_eq_u32 s{S_HP}, 0", f"s_cbranch_scc0 L_wv{k}"]
        for u in range(4):
            o += [f"s_sub_u32 s{S_T0}, s{N+1}, {u*0x8000}", f"s_cmp_gt_i32 s{N+2}, {u}", f"s_cselect_b32 s{S_T0}, s{S_T0}, s{S_OOB}",
                  f"buffer_load_dword v{V_DUMMY}, v{V_WARM}, {sr(SRD_K,4)}, s{S_T0} offen"]
        o += [f"s_branch L_wm{k}", f"L_wv{k}:"]
        for u in range(3):
            o += [f"s_sub_u32 s{S_T0}, s{N+1}, {u*0x8000}", f"s_cmp_gt_i32 s{N+2}, {u}", f"s_cselect_b32 s{S_T0}, s{S_T0}, s{S_OOB}",
                  f"buffer_load_dword v{V_DUMMY}, v{V_WARM}, {sr(SRD_V,4)}, s{S_T0} offen"]
        o += [f"L_wm{k}:"]
        return o

    def pf_group(self, kind, u, N=S_N):
        k = self.uid()
        m0r = (S_M0K if kind == 'K' else S_M0V) + u
        d = dma_k if kind == 'K' else dma_v
        T = S_T0 + 4
        return [f"s_sub_u32 s{T}, s{N+1}, {u*0x8000}",
                f"s_cmp_gt_i32 s{N+2}, {u}",
                f"s_cselect_b32 s{T}, s{T}, s{S_OOB}",
                f"s_cselect_b32 m0, s{m0r}, s{S_TRASH}",
                f"s_bitcmp1_b32 s{N+3}, 10",
                f"s_cbranch_scc1 L_pfb{k}",
                d('A', 0, T), d('A', 1, T),
                f"s_branch L_pfe{k}",
                f"L_pfb{k}:",
                d('B', 0, T), d('B', 1, T), d('B', 2, T), d('B', 3, T),
                f"L_pfe{k}:"]

    def hookB(self, b, clear, wait_first, wait_norm):
        k = self.uid()
        b.e(f"""s_cmp_eq_u32 s{S_FIRST}, 0
                s_cbranch_scc1 L_hb{k}""")
        for kind, u in (('K', 2), ('V', 1), ('K', 3)):
            for t in self.pf_group(kind, u, S_J): b.e(t)
        b.e(f"""s_mov_b32 m0, s{S_TRASH}
                s_mov_b32 s{S_QUSE}, s{S_OOB}""")
        for _ in range(5): b.e(dma_q())
        if clear: b.e(f"s_mov_b32 s{S_FIRST}, 0")
        b.e(f"s_waitcnt vmcnt({wait_first})")
        b.e(f"s_branch L_hc{k}")
        b.e(f"L_hb{k}:")
        b.e(f"s_waitcnt vmcnt({wait_norm})")
        b.e(f"L_hc{k}:")

    def idle_step(self, shape):
        g = G[shape]
        ph = 3
        b = Block(f"idle_{shape}")
        b.e(f"L_idle_{shape}:")
        self.dma_v_part(b, ph, shape)
        self.hookB(b, shape == 'B', (16 if shape == 'A' else 0) + g + 3*g + 5, 4*g)
        b.e("s_barrier")
        for t in self.dma_k_part(ph, shape): b.e(t)
        for t in self.dma_q_part(True): b.e(t)
        return b

    def qreads(self, b, x):
        for s in range(8):
            b.e(f"ds_read_b128 {ar(AQ+32*x+4*s,4)}, v{P+8*x+s}")

    def maxtree(self, x):
        s0 = S + 16*x; t = 2 + 2*x
        o = [f"v_max3_f32 v{t}, v{s0}, v{s0+1}, v{s0+2}",
             f"v_max3_f32 v{t+1}, v{s0+3}, v{s0+4}, v{s0+5}"]
        for i in range(6, 14, 4):
            o += [f"v_max3_f32 v{t}, v{t}, v{s0+i}, v{s0+i+1}", f"v_max3_f32 v{t+1}, v{t+1}, v{s0+i+2}, v{s0+i+3}"]
        o += [f"v_max3_f32 v{t}, v{t}, v{s0+14}, v{s0+15}",
              f"v_max_f32 v{t}, v{t}, v{t+1}",
              f"v_mov_b32 v{t+1}, v{t}",
              "s_nop 1",
              f"v_permlane32_swap_b32 v{t}, v{t+1}",
              f"v_max_f32 v{t}, v{t}, v{t+1}",
              f"v_mul_f32 v{MC+x}, s{S_C}, v{t}"]
        return o

    def head(self, shape, f):
        g = G[shape]
        ph = (f - 1) % 4
        b = Block(f"head_{shape}_{f}")
        b.e(f"L_head_{shape}_{f}:")
        if shape == 'A' and f == 1:
            b.e(f"""s_cmp_eq_u32 s{S_FIRST}, 0
                    s_cbranch_scc1 L_hq1_skip
                    s_mov_b32 s{S_FIRST}, 0
                    s_waitcnt vmcnt({g + 3*g + 5 + g + 1})""")
            self.qreads(b, 0); self.qreads(b, 1)
            b.e("L_hq1_skip:")
        for s in range(8): b.e(kread(s, f % 4))
        b.e(mfma_z(0))
        self.dma_v_part(b, ph, shape)
        b.e(mfma_z(1))
        b.e(f"v_mov_b32 v{L+0+((f-1)%2)}, 0")
        b.e(f"v_mov_b32 v{L+2+((f-1)%2)}, 0")
        b.e(mfma_z(2))
        b.e("s_waitcnt lgkmcnt(0)")
        for s in range(8): b.e(mfma_q(0, s, vr(MJ, 16)))
        if shape == 'A' and f == 0:
            b.e(f"""s_cmp_eq_u32 s{S_FIRST}, 0
                    s_cbranch_scc1 L_hq_skip
                    s_waitcnt vmcnt({3*g})""")
            self.qreads(b, 1)
            b.e("s_waitcnt lgkmcnt(0)")
            b.e("L_hq_skip:")
        sma = self.sm_stream(range(13, 29), ph, ('a1',))
        rest = self.sm_stream(range(29, 32), ph, ('a1', 'b1'))
        valu = ["s_nop 5", "s_nop 4"] + self.maxtree(0) + sma
        qb = [mfma_q(1, s, vr(MJ, 16)) for s in range(8)]
        tmp = Block()
        vv = list(valu)
        for m in qb:
            tmp.e(m); used = 0
            while vv and used + cost(vv[0]) <= 6:
                t = vv.pop(0); tmp.e(t); used += cost(t)
        b.ext(tmp)
        if f == 0: self.hookB(b, True, g + 3*g + 5, 4*g)
        else: b.e(f"s_waitcnt vmcnt({4*g+1})")
        b.e("s_barrier")
        mem = [[kread(s, (f + 1) % 4)] for s in range(8)] + [self.dma_k_part(ph, shape)] + [self.dma_q_part(f == 0)]
        mem += [[vread(j, 0, f % 4), vread(j, 1, f % 4)] for j in range(8)]
        n1 = 12
        valu2 = vv[:n1] + self.maxtree(1) + vv[n1:] + rest
        weave(b, [mfma_z(i) for i in range(3, 8)], mem, valu2, budget=7, mem_per_gap=4)
        if WARM:
            for t in self.warm(): b.e(t)
        b.e("s_waitcnt lgkmcnt(0)")
        stamp(b)
        b.e(f"s_cmp_ge_i32 s{S_REM}, -1")
        b.e(f"s_cbranch_scc0 L_tail_{shape}_{f%4}")
        b.e(f"s_branch L_loop_{shape}_{f%4}")
        return b

    def pfsetup(self):
        N = S_N
        o = [f"s_lshl_b32 s{S_T0}, s{S_PAIR}, 16",
             f"s_bitcmp1_b32 s{N+3}, 10",
             f"s_cselect_b32 s{S_RING}, s{S_T0}, 0",
             f"s_cselect_b32 s{S_T0}, s{S_MBB}, s{S_MBA}"]
        for i in range(4):
            o.append(f"s_add_u32 s{S_M0K+i}, s{S_T0}, {i*8192}")
            o.append(f"s_add_u32 s{S_M0V+i}, s{S_T0}, {32768+i*8192}")
        return o

    def tail(self, shape, ph):
        g = G[shape]
        b = Block(f"tail_{shape}_{ph}")
        b.e(f"L_tail_{shape}_{ph}:")
        stamp(b)
        place = self.plan_mem(g)
        for gp in range(16):
            for it in place[gp]:
                if it[0] == 'V': b.e(vread(it[1], it[2], ph % 4))
        k = self.uid()
        b.e(f"""s_lshl_b32 s{S_T0}, s{S_Q2}, 4
                s_max_i32 s{S_T0}, s{S_T0}, s{S_QCNT}
                s_cmp_gt_i32 s{S_T0}, 1
                s_cbranch_scc0 L_nq{k}
                s_call_b64 {sr(S_RET,2)}, L_qrem_{ph}
                L_nq{k}:""")
        smb = self.sm_stream(range(0, 15), ph, ('b0',))
        for t in smb[:10]: b.e(t)
        b.e("s_waitcnt lgkmcnt(0)")
        pfs = self.pfsetup()
        weave(b, [mfma_v(0, j) for j in range(8)],
              [["s_barrier"] + pfs[:4], pfs[4:8], pfs[8:], self.pf_group('K', 0), [], [], self.pf_group('K', 1)], smb[10:], budget=8, mem_per_gap=1)
        b.e(f"v_cmp_nge_f32 vcc, s{S_THR}, v{L+2*1+ph%2}")
        b.e("s_nop 1")
        self.check_site(b, 1, ph % 2)
        ec = [f"v_mov_b32 v2, v{L+0+ph%2}", f"v_mov_b32 v3, v{L+0+ph%2}", f"v_mov_b32 v4, v{L+2+ph%2}", f"v_mov_b32 v5, v{L+2+ph%2}"] + self.epi_common(shape)
        weave(b, [mfma_v(1, j) for j in range(8)], [], ec, budget=6)
        b.e(f"s_branch L_epi_{shape}")
        return b

    def store_chunks(self, b, subs, scale_ops, extra):
        extra = list(extra)
        chunks = [(x, dh) for x in subs for dh in range(2)]
        R = S + 16
        WA = P + 8
        def reads(ci):
            o = []
            for kk in range(4):
                off = (ci % 2) * 4096 + kk * 1024
                if kk % 2 == 0: o.append(f"ds_read_b128 {vr(R+4*kk,4)}, v{STR} offset:{off}")
                else: o.append(f"ds_read2st64_b64 {vr(R+4*kk,4)}, v{E0} offset0:{off//512} offset1:{off//512}")
            return o
        def stores(ci):
            x, dh = chunks[ci]
            return [f"buffer_store_dwordx4 {vr(R+4*kk,4)}, v{OV+kk}, {sr(SRD_O,4)}, s{S_QOFF} offen offset:{x*256 + dh*128}{NT_O}" for kk in range(4)]
        nch = len(chunks)
        for ci in range(nch + 2):
            st = stores(ci - 2) if ci >= 2 else []
            if st: b.e(f"s_waitcnt lgkmcnt({8 if ci - 1 < nch else 0})")
            if ci < nch:
                x, dh = chunks[ci]
                n = 0
                for dbl in range(2):
                    db = 2*dh + dbl
                    for gq in range(4):
                        tb = P + 4 * (n % 2); X = S + 2 * n
                        for q in range(0, 4, 2):
                            for t in scale_ops(x, 16*db + 4*gq + q, tb + q): b.e(t)
                        b.e(f"v_cvt_pk_bf16_f32 v{X}, v{tb}, v{tb+1}")
                        b.e(f"v_cvt_pk_bf16_f32 v{X+1}, v{tb+2}, v{tb+3}")
                        if st and n % 2 == 0: b.e(st.pop(0))
                        elif extra and n % 4 == 1:
                            for t in extra.pop(0): b.e(t)
                        n += 1
            else:
                while extra:
                    for t in extra.pop(0): b.e(t)
            for t in st: b.e(t)
            if 1 <= ci <= nch:
                for kk in range(4):
                    off = ((ci - 1) % 2) * 4096 + kk * 1024
                    if kk % 2 == 0: b.e(f"ds_read_b128 {vr(R+4*kk,4)}, v{STR} offset:{off}")
                    else:
                        b.e(f"ds_read_b64 {vr(R+4*kk,2)}, v{STR} offset:{off+8}")
                        b.e(f"ds_read_b64 {vr(R+4*kk+2,2)}, v{STR} offset:{off}")
            if ci < nch:
                for n in range(8):
                    b.e(f"ds_write_b64 v{WA+n}, {vr(S+2*n,2)} offset:{(ci%2)*4096}")

    def epi_common(self, shape):
        J = S_J
        o = f"""s_and_b32 s{S_T0}, s{J+3}, 63
                v_and_b32 v6, 31, v{V_LANE}
                v_lshrrev_b32 v7, 5, v{V_LANE}
                v_lshlrev_b32 v{STW}, 7, v6
                v_bfe_u32 v{E0}, v{V_LANE}, 3, 1
                v_xor_b32 v7, v7, v{E0}
                v_lshl_add_u32 v{STW}, v7, 3, v{STW}
                v_and_b32 v6, 7, v{V_LANE}
                v_lshl_add_u32 v{STW}, v6, 4, v{STW}
                v_add_u32 v{STW}, s{S_STG}, v{STW}
                v_permlane32_swap_b32 v2, v3
                v_permlane32_swap_b32 v4, v5
                v_lshrrev_b32 v6, 3, v{V_LANE}
                v_and_b32 v7, 7, v{V_LANE}
                v_add_f32 v2, v2, v3
                v_add_f32 v4, v4, v5
                v_xor_b32 v{STR}, v6, v7
                v_lshlrev_b32 v{STR}, 4, v{STR}
                v_lshl_add_u32 v{STR}, v6, 7, v{STR}
                v_add_u32 v{STR}, s{S_STG}, v{STR}
                v_lshlrev_b32 v7, 4, v7
                v_lshl_add_u32 v7, v6, 12, v7
                v_mov_b32 v{E1}, s{S_OOB}""".split('\n')
        o = [t.strip() for t in o]
        for kk in range(4):
            o += [f"v_add_u32 v{E0}, {8*kk}, v6",
                  f"v_cmp_gt_u32 vcc, s{S_T0}, v{E0}",
                  f"v_add_u32 v{E0}, {kk*32768}, v7",
                  "s_nop 0",
                  f"v_cndmask_b32 v{OV+kk}, v{E1}, v{E0}, vcc"]
        if shape == 'A':
            o += ["v_rcp_f32 v2, v2", "v_rcp_f32 v4, v4"]
        else:
            o += [f"s_lshl_b32 s{S_T0}, s{S_PAIR}, 16",
                  f"s_lshl_b32 s{S_T0+1}, s{S_HP}, 14",
                  f"s_add_u32 s{S_T0}, s{S_T0}, s{S_T0+1}",
                  f"s_add_u32 s{S_T0}, s{S_T0}, 0x8000",
                  f"s_xor_b32 s{S_T0+1}, s{S_T0}, 0x10000",
                  f"v_lshlrev_b32 v6, 4, v{V_LANE}",
                  f"v_add_u32 v{XW}, s{S_T0}, v6",
                  f"v_add_u32 v{XR}, s{S_T0+1}, v6",
                  f"s_lshl_b32 s{S_T0}, s{S_W}, 9",
                  f"s_add_u32 s{S_T0}, s{S_T0}, 0x6000",
                  f"s_xor_b32 s{S_T0+1}, s{S_T0}, 0x400",
                  f"v_lshlrev_b32 v6, 3, v{V_LANE}",
                  f"v_add_u32 v{XM}, s{S_T0}, v6",
                  f"v_add_u32 v{XN}, s{S_T0+1}, v6"]
        return o

    def epilogue(self, shape):
        b = Block(f"epi_{shape}")
        b.e(f"L_epi_{shape}:")
        stamp(b)
        for n in range(8): b.e(f"v_xor_b32 v{P+8+n}, {n*16}, v{STW}")
        def ex(): return [self.pf_group('V', 0), self.pf_group('K', 2), self.pf_group('V', 1), self.pf_group('K', 3)]
        if shape == 'A':
            b.e("s_nop 0")
            self.store_chunks(b, (0, 1), lambda x, i, d: [f"v_pk_mul_f32 {vr(d,2)}, {vr(O+64*x+i,2)}, {vr(2+2*x,2)} op_sel_hi:[1,0]"], ex())
            b.e(f"s_mov_b32 s{S_WSEL}, 0")
            b.e("s_branch L_job")
        else:
            b.e(f"""s_cmp_eq_u32 s{S_PAIR}, 0
                    s_cbranch_scc0 L_epiB_1""")
            for own in range(2):
                oth = own ^ 1
                if own == 1: b.e("L_epiB_1:")
                b.e(f"v_mov_b32 v6, v{MC+oth}")
                b.e(f"v_mov_b32 v7, v{2+2*oth}")
                b.e("s_nop 7")
                b.e(f"ds_write_b64 v{XM}, v[6:7]")
                for i in range(16):
                    b.e(f"ds_write_b128 v{XW}, {vr(O+64*oth+4*i,4)} offset:{i*1024}")
                b.e("s_waitcnt lgkmcnt(0)")
                b.e("s_barrier")
                b.e(f"ds_read_b64 v[6:7], v{XN}")
                for i in range(16):
                    b.e(f"ds_read_b128 {vr(O+64*oth+4*i,4)}, v{XR} offset:{i*1024}")
                lo = 2 + 2*own
                b.e(f"""s_waitcnt lgkmcnt(15)
                        s_nop 0
                        s_waitcnt lgkmcnt(15)
                        v_max_f32 v{FO}, v{MC+own}, v6
                        v_sub_f32 v{FT}, v6, v{FO}
                        v_sub_f32 v{FO}, v{MC+own}, v{FO}
                        v_exp_f32 v{FT}, v{FT}
                        v_exp_f32 v{FO}, v{FO}
                        s_nop 0
                        v_mul_f32 v7, v7, v{FT}
                        v_fma_f32 v7, v{lo}, v{FO}, v7
                        v_rcp_f32 v7, v7
                        s_nop 0
                        v_mul_f32 v{FO}, v{FO}, v7
                        v_mul_f32 v{FT}, v{FT}, v7
                        s_waitcnt lgkmcnt(0)
                        s_barrier""")
                self.store_chunks(b, (own,), lambda x, i, d, own=own, oth=oth: [
                    f"v_pk_mul_f32 {vr(d,2)}, {vr(O+64*own+i,2)}, {vr(FO,2)} op_sel_hi:[1,0]",
                    f"v_pk_fma_f32 {vr(d,2)}, {vr(O+64*oth+i,2)}, {vr(FT,2)}, {vr(d,2)} op_sel_hi:[1,0,1]"], ex())
                b.e(f"s_mov_b32 s{S_WSEL}, 1")
                b.e("s_branch L_job")
        return b

    def rare(self, x, par):
        b = Block(f"rare_{x}_{par}")
        b.e(f"L_rare_{x}_{par}:")
        s0 = S + 16*x
        b.e("s_nop 15")
        b.e(f"v_max3_f32 v2, v{s0}, v{s0+1}, v{s0+2}")
        for i in range(3, 15, 2):
            b.e(f"v_max3_f32 v2, v2, v{s0+i}, v{s0+i+1}")
        b.e(f"v_max_f32 v2, v2, v{s0+15}")
        b.e("v_mov_b32 v3, v2")
        b.e("s_nop 1")
        b.e("v_permlane32_swap_b32 v2, v3")
        b.e("v_max_f32 v2, v2, v3")
        b.e(f"v_mul_f32 v2, s{S_C}, v2")
        b.e(f"v_max_f32 v2, v2, v{MC+x}")
        b.e(f"v_sub_f32 v3, v{MC+x}, v2")
        b.e("v_exp_f32 v3, v3")
        b.e(f"v_mov_b32 v{MC+x}, v2")
        b.e(f"v_mul_f32 v{L+2*x+par}, v3, v{L+2*x+(par^1)}")
        for i in range(64):
            b.e(f"v_mul_f32 v{O+64*x+i}, v3, v{O+64*x+i}")
        for k in range(8):
            b.e(f"v_fma_f32 v4, v{s0+2*k}, s{S_C}, -v{MC+x}")
            b.e(f"v_fma_f32 v5, v{s0+2*k+1}, s{S_C}, -v{MC+x}")
            b.e("v_exp_f32 v4, v4")
            b.e("v_exp_f32 v5, v5")
            b.e("s_nop 0")
            b.e(f"v_add_f32 v{L+2*x+par}, v{L+2*x+par}, v4")
            b.e(f"v_add_f32 v{L+2*x+par}, v{L+2*x+par}, v5")
            b.e(f"v_cvt_pk_bf16_f32 v{P+8*x+k}, v4, v5")
        b.e("s_nop 1")
        b.e(f"s_setpc_b64 {sr(S_RET,2)}")
        return b

    def prologue(self):
        b = Block("prologue")
        b.e(f"""s_cmp_ge_u32 s2, 256
                s_cbranch_scc1 L_end
                s_load_dwordx4 s[52:55], s[0:1], 0
                s_load_dwordx2 s[56:57], s[0:1], 16
                s_load_dwordx2 s[58:59], s[0:1], 32
                s_getpc_b64 {sr(S_TAB,2)}""")
        b.e("L_pc:")
        b.e(f"""s_add_u32 s{S_TAB}, s{S_TAB}, jobtab-L_pc
                s_addc_u32 s{S_TAB+1}, s{S_TAB+1}, 0
                v_lshrrev_b32 v1, 6, v0
                v_and_b32 v{V_LANE}, 63, v0
                v_readfirstlane_b32 s{S_W}, v1
                v_lshlrev_b32 v2, 7, v0
                s_getpc_b64 s[34:35]
                {'global_load_dword v13, v2, s[34:35]' if CODEWARM else 's_nop 0'}
                v_add_u32 v2, 0x8000, v2
                {'global_load_dword v13, v2, s[34:35]' if CODEWARM else 's_nop 0'}
                s_lshr_b32 s{S_PAIR}, s{S_W}, 1
                s_and_b32 s{S_HP}, s{S_W}, 1
                s_lshl_b32 s3, s2, 7
                s_lshl_b32 s4, s{S_PAIR}, 6
                s_add_u32 s3, s3, s4
                s_add_u32 s{S_TAB}, s{S_TAB}, s3
                s_addc_u32 s{S_TAB+1}, s{S_TAB+1}, 0
                s_load_dwordx4 {sr(S_N,4)}, {sr(S_TAB,2)}, 0
                s_load_dwordx8 {sr(S_JT,8)}, {sr(S_TAB,2)}, 16
                s_mov_b32 s{S_C}, {C_SCALE:#x}
                s_mov_b32 s{S_THR}, {THR:#x}
                s_mov_b32 s{S_OOB}, 0x80000000
                s_mov_b32 s{S_TRASH}, 0x3c000
                s_lshl_b32 s{S_STG}, s{S_PAIR}, 16
                s_lshl_b32 s3, s{S_HP}, 13
                s_add_u32 s{S_STG}, s{S_STG}, s3
                s_add_u32 s{S_STG}, s{S_STG}, 0xc000
                s_lshl_b32 s{S_MBA}, s{S_W}, 11
                s_lshl_b32 s{S_MBB}, s{S_PAIR}, 16
                s_lshl_b32 s3, s{S_HP}, 12
                s_add_u32 s{S_MBB}, s{S_MBB}, s3""")
        b.e(f"""v_lshrrev_b32 v5, 4, v{V_LANE}
                v_and_b32 v6, 15, v{V_LANE}
                v_xor_b32 v7, v6, v5
                v_lshlrev_b32 v7, 4, v7
                v_lshl_add_u32 v2, v5, 10, v7
                v_lshl_add_u32 v{DQ}, v5, 12, v7
                v_xor_b32 v{DQ+1}, 64, v{DQ}
                v_xor_b32 v{DQ+2}, 0x80, v{DQ}
                v_xor_b32 v{DQ+3}, 0xc0, v{DQ}
                v_lshrrev_b32 v4, 1, v{V_LANE}
                v_and_b32 v{V_WARM}, 1, v{V_LANE}
                v_lshlrev_b32 v{V_WARM}, 7, v{V_WARM}
                v_lshl_add_u32 v{V_WARM}, v4, 10, v{V_WARM}
                v_lshlrev_b32 v7, 2, v5
                v_xor_b32 v7, v6, v7
                v_lshlrev_b32 v7, 4, v7
                v_lshl_add_u32 v3, v5, 10, v7""")
        for sh in 'AB':
            b.e(f"s_lshl_b32 s5, s{S_W}, 1" if sh == 'A' else f"s_lshl_b32 s5, s{S_HP}, 2")
            for i in range(G[sh]):
                b.e(f"""s_add_u32 s3, s5, {i}
                        s_and_b32 s4, s3, 3
                        s_lshl_b32 s4, s4, 6
                        s_lshl_b32 s3, s3, 12
                        s_sub_u32 s3, s3, {i*1024}
                        v_xor_b32 v{DKR[sh][i]}, s4, v2
                        v_add_u32 v{DKR[sh][i]}, s3, v{DKR[sh][i]}
                        v_add_u32 v{DVR[sh][i]}, s3, v3""")
        b.e(f"""s_waitcnt lgkmcnt(0)
                s_mov_b32 s{SRD_Q}, s52
                s_mov_b32 s{SRD_Q+1}, s53
                s_mov_b32 s{SRD_Q+2}, {QBYTES}
                s_mov_b32 s{SRD_Q+3}, 0x00020000
                s_mov_b32 s{SRD_K}, s54
                s_mov_b32 s{SRD_K+1}, s55
                s_mov_b32 s{SRD_K+2}, {KBYTES}
                s_mov_b32 s{SRD_K+3}, 0x00020000
                s_mov_b32 s{SRD_V}, s56
                s_mov_b32 s{SRD_V+1}, s57
                s_mov_b32 s{SRD_V+2}, {KBYTES}
                s_mov_b32 s{SRD_V+3}, 0x00020000
                s_mov_b32 s{SRD_O}, s58
                s_mov_b32 s{SRD_O+1}, s59
                s_mov_b32 s{SRD_O+2}, {QBYTES}
                s_mov_b32 s{SRD_O+3}, 0x00020000""")
        if STAMPS:
            b.e(f"""s_load_dwordx2 s[84:85], s[0:1], 48
                    s_waitcnt lgkmcnt(0)
                    s_mov_b32 s86, 0x1000000
                    s_mov_b32 s87, 0x00020000
                    s_lshl_b32 s82, s2, 2
                    s_add_u32 s82, s82, s{S_W}
                    s_lshl_b32 s82, s82, 8""")
            stamp(b, True)
            stamp(b)
        b.e(f"""s_mov_b32 s{S_J+3}, 0
                s_mov_b32 s{S_FIRST}, 1""")
        for t in self.pfsetup(): b.e(t)
        for t in self.pf_group('K', 0): b.e(t)
        self.qstate(b)
        b.e(f"""s_and_b32 s{S_T0}, s{S_N+3}, 0x600
                s_cmp_eq_u32 s{S_T0}, 0x200
                s_cbranch_scc1 L_noq""")
        b.e(f"s_call_b64 {sr(S_RET,2)}, L_qrem_0")
        b.e("L_noq:")
        for i in range(4): b.e(f"v_accvgpr_write_b32 a{AZ+i}, 0")
        b.e(f"""v_mov_b32 v{V_M16}, 0xffff
                v_and_b32 v6, 31, v{V_LANE}
                v_lshrrev_b32 v2, 5, v{V_LANE}
                v_lshlrev_b32 v3, 2, v2
                v_sub_u32 v3, v3, v6
                v_mov_b32 v4, {NEGBIG:#x}""")
        for r in range(16):
            kk = 8*(r//4) + r % 4
            b.e(f"v_cmp_lt_i32 vcc, {-kk}, v3")
            b.e("s_nop 1")
            b.e(f"v_cndmask_b32 v{MASK+r}, 0, v4, vcc")
        b.e("""v_and_b32 v5, 15, v6
               v_xor_b32 v5, v5, v2
               v_lshlrev_b32 v5, 4, v5
               v_lshl_add_u32 v5, v6, 8, v5""")
        for s in range(8):
            b.e(f"v_xor_b32 v{KADDR+s}, {32*s}, v5")
        b.e(f"""v_bfe_u32 v5, v{V_LANE}, 2, 2
                v_lshl_add_u32 v6, v2, 2, v5
                v_lshlrev_b32 v6, 8, v6
                v_lshl_add_u32 v6, v5, 6, v6
                v_bfe_u32 v7, v{V_LANE}, 4, 1
                v_lshl_add_u32 v6, v7, 5, v6
                v_and_b32 v7, 3, v{V_LANE}
                v_lshl_add_u32 v6, v7, 3, v6""")
        for db in range(4):
            b.e(f"v_xor_b32 v{VADDR+db}, {64*db}, v6")
        b.e(f"""s_and_b32 s{S_T0}, s{S_N+3}, 0x600
                s_cmp_eq_u32 s{S_T0}, 0
                s_cselect_b32 s{S_WSEL}, 2, 3""")
        return b

    def qstate(self, b):
        N = S_N
        b.e(f"""s_lshl_b32 s{S_T0}, s{S_HP}, 9
                s_add_u32 s{S_QSO}, s{N}, s{S_T0}
                s_lshl_b32 s{S_T0}, s{S_PAIR}, 8
                s_add_u32 s{S_T0+1}, s{S_QSO}, s{S_T0}
                s_lshl_b32 s{S_T0}, s{S_W}, 13
                s_add_u32 s{S_T0+2}, s{S_T0}, 0x20000
                s_add_u32 s{S_QM02}, s{S_T0}, 0x10000
                s_lshl_b32 s{S_T0}, s{S_HP}, 14
                s_add_u32 s{S_T0+5}, s{S_T0}, 0x20000
                s_add_u32 s{S_T0+6}, s{S_T0}, 0x22000
                s_lshl_b32 s{S_T0}, s{S_PAIR}, 13
                s_add_u32 s{S_T0+7}, s{S_T0+5}, s{S_T0}
                s_add_u32 s{S_QSO2}, s{S_QSO}, 256
                s_bitcmp1_b32 s{N+3}, 10
                s_cselect_b32 s{S_QSO}, s{S_T0+1}, s{S_QSO}
                s_cselect_b32 s{S_QST}, s{S_T0+5}, s{S_T0+2}
                s_cselect_b32 s{S_QST2}, s{S_T0+6}, s{S_QM02}
                s_cselect_b32 s{S_QM0}, s{S_T0+7}, s{S_T0+2}
                s_cselect_b32 s{S_QMADJ}, s{S_T0+7}, s{S_QM02}
                s_cselect_b32 s{S_QCNT}, 9, 17
                s_cselect_b32 s{S_QADJV}, 0, {(256 - 131072) & 0xffffffff:#x}
                s_cselect_b32 s{S_Q2}, 0, 1
                s_lshr_b32 s{S_T0}, s{S_J+3}, 10
                s_and_b32 s{S_Q2}, s{S_Q2}, s{S_T0}
                s_cmp_eq_u32 s{S_Q2}, 1
                s_cselect_b32 s{S_QCNT}, 9, s{S_QCNT}
                s_cselect_b32 s{S_QADJV}, 0, s{S_QADJV}
                s_cselect_b32 s{S_QMADJ}, s{S_QM0}, s{S_QMADJ}
                s_bitcmp1_b32 s{N+3}, 11
                s_cselect_b32 s{S_QCNT}, s{S_QCNT}, 0
                s_cselect_b32 s{S_Q2}, s{S_Q2}, 0""")

    def qrem(self):
        b = Block("qrem")
        for i in range(4):
            b.e(f"L_qrem_{i}:")
            for t in Q_POST[2:]: b.e(t)
            b.e(f"""s_cmp_gt_i32 s{S_QCNT}, 0
                    s_cbranch_scc0 L_qrem_done
                    s_mov_b32 s{S_QUSE}, s{S_QSO}
                    s_mov_b32 m0, s{S_QM0}""")
            b.e(Q_POST[0])
            b.e(dma_q(i))
            b.e(Q_POST[1])
        b.e("s_branch L_qrem_0")
        b.e("L_qrem_done:")
        b.e(f"""s_cmp_eq_u32 s{S_Q2}, 0
                s_cbranch_scc1 L_qrem_ret
                s_mov_b32 s{S_Q2}, 0
                s_mov_b32 s{S_QSO}, s{S_QSO2}
                s_mov_b32 s{S_QM0}, s{S_QM02}
                s_mov_b32 s{S_QMADJ}, s{S_QM02}
                s_mov_b32 s{S_QCNT}, 9
                s_branch L_qrem_0
                L_qrem_ret:""")
        b.e(f"s_setpc_b64 {sr(S_RET,2)}")
        return b

    def jobstart(self):
        b = Block("jobstart")
        J = S_J
        b.e("L_job:")
        b.e(f"""s_bitcmp1_b32 s{S_N+3}, 11
                s_cbranch_scc0 L_end""")
        for i in range(8):
            b.e(f"v_and_or_b32 v{P+i}, v{KADDR+i}, v{V_M16}, s{S_QST}")
            b.e(f"v_and_or_b32 v{P+8+i}, v{KADDR+i}, v{V_M16}, s{S_QST2}")
        b.e(f"""s_mov_b64 {sr(J,2)}, {sr(S_N,2)}
                s_mov_b64 {sr(J+2,2)}, {sr(S_N+2,2)}
                s_mov_b64 {sr(S_N,2)}, {sr(S_JT,2)}
                s_mov_b64 {sr(S_N+2,2)}, {sr(S_JT+2,2)}
                s_mov_b64 {sr(S_JT,2)}, {sr(S_JT+4,2)}
                s_mov_b64 {sr(S_JT+2,2)}, {sr(S_JT+6,2)}
                s_mov_b64 {sr(S_JT+6,2)}, 0
                s_lshl_b32 s{S_T0}, s{S_HP}, 9
                s_add_u32 s{S_QOFF}, s{J}, s{S_T0}""")
        for i in range(8):
            b.e(f"v_and_or_b32 v{KADDR+i}, v{KADDR+i}, v{V_M16}, s{S_RING}")
        for i in range(4):
            b.e(f"v_and_or_b32 v{VADDR+i}, v{VADDR+i}, v{V_M16}, s{S_RING}")
        b.e(f"""s_bitcmp1_b32 s{J+3}, 8
                s_cselect_b32 s{S_T0}, -1, 0""")
        for r in range(16):
            b.e(f"v_and_b32 v{MJ+r}, s{S_T0}, v{MASK+r}")
        b.e(f"""s_sub_u32 s{S_REM}, s{J+2}, 2
                s_sub_u32 s{S_VOFF}, s{J+1}, 0x10000
                s_cmp_ge_u32 s{S_WSEL}, 2
                s_cbranch_scc1 L_js_first""")
        self.qstate(b)
        b.e(f"""s_cmp_eq_u32 s{S_WSEL}, 0
                s_cbranch_scc1 L_js_w0
                s_waitcnt vmcnt(18)
                L_js_w0:
                s_waitcnt vmcnt(26)
                s_barrier""")
        stamp(b)
        self.qreads(b, 0)
        self.qreads(b, 1)
        b.e("s_branch L_js_go")
        b.e("L_js_first:")
        b.e(f"""s_cmp_eq_u32 s{S_WSEL}, 2
                s_cbranch_scc1 L_js_w2
                s_waitcnt vmcnt(0)
                L_js_w2:
                s_waitcnt vmcnt(8)
                s_barrier""")
        stamp(b)
        self.qreads(b, 0)
        self.qreads(b, 1)
        for kind, u in (('K', 1), ('V', 0)):
            for t in self.pf_group(kind, u, S_J): b.e(t)
        b.e(f"s_call_b64 {sr(S_RET,2)}, L_qrem_0")
        self.qstate(b)
        b.e("L_js_go:")
        stamp(b)
        b.e(f"""s_bitcmp1_b32 s{J+3}, 10
                s_cbranch_scc1 L_pre_B""")
        return b

    def pre(self, shape):
        J = S_J
        b = Block(f"pre_{shape}")
        b.e(f"L_pre_{shape}:")
        b.e(f"s_bitcmp1_b32 s{J+3}, 9")
        b.e(f"s_cbranch_scc0 L_head_{shape}_0")
        return b

    def build(self, wg):
        pro = self.prologue()
        self.add(pro)
        self.add(self.jobstart())
        for shape in 'AB':
            self.add(self.pre(shape))
            self.add(self.idle_step(shape))
            self.add(self.head(shape, 1))
            self.add(self.head(shape, 0))
            al = Block(f"align_{shape}"); al.e(".p2align 6"); self.add(al)
            for ph in range(4): self.add(self.step(shape, ph))
            for ph in range(4): self.add(self.tail(shape, ph))
            self.add(self.epilogue(shape))
        self.add(self.qrem())
        for x in range(2):
            for par in range(2): self.add(self.rare(x, par))
        self.add(self.stubs)
        end = Block("end"); end.e("L_end:")
        if STAMPS:
            end.e("s_cmp_ge_u32 s2, 256"); end.e("s_cbranch_scc1 L_end2")
            stamp(end); end.e("s_waitcnt vmcnt(0)"); stamp(end); stamp(end, True)
            end.e("L_end2:")
        end.e("s_endpgm"); self.add(end)
        B = self.blocks
        paths = []
        for sh in 'AB':
            lp = [f"loop_{sh}_{p}" for p in range(4)]
            paths.append(["prologue", "jobstart", f"pre_{sh}", f"head_{sh}_0"] + lp + lp)
            paths.append([f"pre_{sh}", f"idle_{sh}", f"head_{sh}_1"] + lp[1:] + lp)
            for ph in range(4):
                paths.append([lp[(ph-2) % 4], lp[(ph-1) % 4], f"tail_{sh}_{ph}", f"epi_{sh}", "jobstart"])
            paths.append([f"head_{sh}_0", f"tail_{sh}_0", f"epi_{sh}"])
            paths.append([f"head_{sh}_1", f"tail_{sh}_1", f"epi_{sh}"])
        paths.append(["qrem"])
        for x in range(2):
            for par in range(2): paths.append([f"rare_{x}_{par}", "loop_A_0"])
        nprob = 0
        for p in paths:
            for skip in (False, True):
                seq = sum((B[n].ins for n in p), [])
                if skip: seq = prune_forward_skips(seq)
                for pr in check_hazards(seq, "+".join(p)):
                    print("HAZARD", pr, file=sys.stderr); nprob += 1
        assert nprob == 0
        txt = ""
        for n in self.order: txt += B[n].text()
        return txt

def prune_forward_skips(seq):
    out = []; i = 0
    labels = {ins.text[:-1]: k for k, ins in enumerate(seq) if ins.kind == 'label' and ins.text.endswith(':')}
    while i < len(seq):
        ins = seq[i]; out.append(ins)
        if ins.op.startswith('s_cbranch_scc'):
            tgt = ins.ops[0]
            if tgt in labels and labels[tgt] > i and not tgt.startswith(('L_tail', 'L_loop', 'L_head', 'L_pre', 'L_end', 'L_epi')):
                i = labels[tgt]; continue
        i += 1
    return out

def table(wg):
    CU = sched.CU
    words = []
    for w in range(256):
        ent = [[], []]
        assert len(wg[w]) <= 3
        for (seq, kvh, kind, b, N) in wg[w]:
            s0, Ls = CU[seq], CU[seq+1] - CU[seq]
            def q(bb): return ((s0 + 32*bb) * 16 + kvh * 4) * 256
            def kv(t): return ((s0 + 32*t) * 4 + kvh) * 256
            def nv(bb): return max(0, min(32, Ls - 32*bb))
            if kind == 'A':
                ent[0] += [q(b), kv(b+1), N, nv(b) | 1 << 8 | 1 << 9 | 1 << 11]
                ent[1] += [q(b+1), kv(b+1), N, nv(b+1) | 1 << 8 | 1 << 11]
            else:
                n = b + 1
                assert n >= 2 and N == (n + 1) // 2
                n0 = n - N
                d = N - n0
                ent[0] += [q(b), kv(b), N, nv(b) | 1 << 8 | 1 << 10 | 1 << 11]
                ent[1] += [q(b), kv(n0 - 1 + d), N, nv(b) | d << 9 | 1 << 10 | 1 << 11]
        for p in range(2):
            words += ent[p] + [0] * (16 - len(ent[p]))
    return words

THRB, OVH = 32, 4.0
def main(out):
    wg, st = sched.build(THRB, OVH)
    g = Gen()
    body = g.build(wg)
    hdr = open(f"cdna_kernels/{NAME}.s.ref").read().split("; Override launch")[0]
    s = hdr
    s += f"; @launch grid=(256,1,1) block=(256,1,1) lds={LDS_BYTES}\n"
    s += f""".amdgcn_target "amdgcn-amd-amdhsa--gfx950"
.text
.globl {NAME}_kernel
.p2align 8
.type {NAME}_kernel,@function
{NAME}_kernel:
"""
    s += body
    s += ".p2align 6\n.type jobtab,@object\njobtab:\n"
    w = table(wg)
    for i in range(0, len(w), 8):
        s += ".long " + ", ".join(f"{x:#x}" for x in w[i:i+8]) + "\n"
    s += f".size jobtab, {len(w)*4}\n"
    s += f""".section .rodata,"a"
.p2align 6
.amdhsa_kernel {NAME}_kernel
  .amdhsa_next_free_vgpr 392
  .amdhsa_next_free_sgpr 102
  .amdhsa_accum_offset 256
  .amdhsa_group_segment_fixed_size 0
  .amdhsa_kernarg_size 56
  .amdhsa_user_sgpr_count 2
  .amdhsa_user_sgpr_kernarg_segment_ptr 1
  .amdhsa_system_sgpr_workgroup_id_x 1
.end_amdhsa_kernel
"""
    open(out, "w").write(s)

if __name__ == "__main__":
    args = [a for a in sys.argv[1:] if not a.startswith('-')]
    if '-stamps' in sys.argv: STAMPS = True
    for a in sys.argv[1:]:
        if a.startswith('-D'):
            k, v = a[2:].split('=')
            globals()[k] = (' nt' if v == '1' else '') if k.startswith('NT_') else eval(v)
    main(args[0] if args else f"cdna_kernels/{NAME}.s")
```

```python
import sys, struct, math
from asmlib import *
import sched

NAME = "standalone__ragged_sequences_varlen_flash_attn__ragged"
T_TOK = 7180
QBYTES = T_TOK * 16 * 256
KBYTES = T_TOK * 4 * 256
def f32(x): return struct.unpack('<I', struct.pack('<f', x))[0]
C_SCALE = f32(math.log2(math.e) / math.sqrt(128.0))
THR = f32(2.0 ** 40)
NEGBIG = f32(-1.0e30)
LDS_BYTES = 163840
NT_Q = ' nt'; NT_KV = ''; NT_O = ' nt'
WARM = False
CODEWARM = False
DBG = False
NT_PF = ' nt'
X_NOST = False; X_NOSTG = False; X_NOPF = False; X_NOBAR = False; X_NOVM = False; X_NODMA = False; X_NOLDS = False; X_NOSALU = False

DKR = {'A': [0, 1], 'B': [48, 49, 50, 51]}
DVR = {'A': [78, 79], 'B': [52, 53, 54, 55]}
DQ = 8
V_WARM = 12
V_DUMMY = 13
V_M16 = 14; V_LANE = 15
MASK = 16; MJ = 32
VADDR = 56; KADDR = 60
MC = 68; L = 70; TT = 74
P = 80; S = 96; O = 128
AQ = 0; AK = 64; AV = 96; AZ = 128
OV = MJ; STW = MJ + 4; STR = MJ + 5; XW = MJ + 6; XR = MJ + 7; XM = MJ + 8; XN = MJ + 9; E0 = MJ + 10; E1 = MJ + 11; FO = MJ + 12; FT = MJ + 14
S_FIRST, S_WSEL, S_Q2, S_QSO2, S_QM02 = 3, 4, 5, 6, 7
SRD_Q, SRD_K, SRD_V, SRD_O = 8, 12, 16, 20
S_C, S_THR, S_OOB, S_W, S_PAIR, S_HP = 24, 25, 26, 27, 28, 29
S_RET = 30; S_TAB = 32; S_J = 36
S_QOFF, S_VOFF, S_REM, S_KUSE, S_VUSE, S_KT, S_QCNT, S_QSO, S_QM0, S_QUSE = range(40, 50)
S_T0 = 50
S_M0K = 60; S_M0V = 64; S_RING = 68; S_QADJ = 69; S_QADJV = 70; S_QMADJ = 71
S_N = 72; S_TRASH = 76; S_QST = 77; S_STG = 78; S_QST2 = 79
S_JT = 88; S_MBA = 96; S_MBB = 97

def vr(b, n): return f"v[{b}:{b+n-1}]"
def ar(b, n): return f"a[{b}:{b+n-1}]"
def sr(b, n): return f"s[{b}:{b+n-1}]"
G = {'A': 2, 'B': 4}

def mfma_q(x, s, first_c):
    c = first_c if s == 0 else vr(S + 16*x, 16)
    return f"v_mfma_f32_32x32x16_bf16 {vr(S+16*x,16)}, {ar(AK+4*s,4)}, {ar(AQ+32*x+4*s,4)}, {c}"
def mfma_v(x, j):
    u, db = j // 4, j % 4
    o = vr(O + 64*x + 16*db, 16)
    return f"v_mfma_f32_32x32x16_bf16 {o}, {ar(AV+4*j,4)}, {vr(P+8*x+4*u,4)}, {o}"
def mfma_z(i):
    return f"v_mfma_f32_32x32x16_bf16 {vr(O+16*i,16)}, {ar(AZ,4)}, {ar(AZ,4)}, 0"
def kread(s, slot):
    return f"ds_read_b128 {ar(AK+4*s,4)}, v{KADDR+s} offset:{slot*8192}"
def vread(j, e, slot):
    u, db = j // 4, j % 4
    return f"ds_read_b64_tr_b16 {ar(AV+4*j+2*e,2)}, v{VADDR+db} offset:{32768 + slot*8192 + (16*u+8*e)*256}"
def dma_k(sh, i, suse=S_KUSE):
    return f"buffer_load_dwordx4 v{DKR[sh][i]}, {sr(SRD_K,4)}, s{suse} offen offset:{i*1024}{NT_KV if suse == S_KUSE else NT_PF} lds"
def dma_v(sh, i, suse=S_VUSE):
    return f"buffer_load_dwordx4 v{DVR[sh][i]}, {sr(SRD_V,4)}, s{suse} offen offset:{i*1024}{NT_KV if suse == S_VUSE else NT_PF} lds"
def dma_q(i=0):
    return f"buffer_load_dwordx4 v{DQ+i}, {sr(SRD_Q,4)}, s{S_QUSE} offen{NT_Q} lds"
Q_PRE = [f"s_cmp_gt_i32 s{S_QCNT}, 0",
         f"s_cselect_b32 s{S_QUSE}, s{S_QSO}, s{S_OOB}",
         f"s_cselect_b32 m0, s{S_QM0}, s{S_TRASH}"]
Q_POST = [f"s_add_u32 s{S_QSO}, s{S_QSO}, 0x4000",
          f"s_add_u32 s{S_QM0}, s{S_QM0}, 0x400",
          f"s_sub_u32 s{S_QCNT}, s{S_QCNT}, 1",
          f"s_cmp_eq_u32 s{S_QCNT}, 8",
          f"s_cselect_b32 s{S_QADJ}, s{S_QADJV}, 0",
          f"s_cselect_b32 s{S_QM0}, s{S_QMADJ}, s{S_QM0}",
          f"s_add_u32 s{S_QSO}, s{S_QSO}, s{S_QADJ}"]
def opF(x, e): return f"v_fma_f32 v{TT+e%4}, v{S+16*x+e}, s{S_C}, -v{MC+x}"
def opE(x, e): return f"v_exp_f32 v{TT+e%4}, v{TT+e%4}"
def opA(x, e, par):
    src = L + 2*x + (par ^ 1) if e == 0 else L + 2*x + par
    return f"v_add_f32 v{L+2*x+par}, v{src}, v{TT+e%4}"
def opC(x, k): return f"v_cvt_pk_bf16_f32 v{P+8*x+k}, v{TT+(2*k)%4}, v{TT+(2*k+1)%4}"

STAMPS = False
def stamp(b, real=False):
    if not STAMPS: return
    b.e(f"""{'s_memrealtime' if real else 's_memtime'} s[80:81]
            s_waitcnt lgkmcnt(0)
            v_mov_b32 v6, s80
            v_mov_b32 v7, s82
            s_add_u32 s82, s82, 4
            buffer_store_dword v6, v7, s[84:87], 0 offen""")

def cost(t):
    op = t.split()[0]
    if op.endswith(':'): return 0
    if op.startswith('v_exp') or op.startswith('v_rcp') or op.startswith('buffer'): return 2
    if op == 's_nop': return int(t.split()[1]) + 1
    return 1

def weave(b, mfmas, mem, valu, budget=6, mem_per_gap=2):
    mem = list(mem); valu = list(valu)
    for m in mfmas:
        b.e(m)
        used = 0
        for _ in range(mem_per_gap):
            if mem:
                it = mem.pop(0)
                for t in it: b.e(t); used += cost(t)
        while valu and used + cost(valu[0]) <= budget:
            t = valu.pop(0); b.e(t); used += cost(t)
    for it in mem:
        for t in it: b.e(t)
    for t in valu: b.e(t)

class Gen:
    def __init__(self):
        self.blocks = {}
        self.order = []
        self.stubs = Block("stubs")
        self.nstub = 0
    def add(self, b):
        self.blocks[b.name] = b; self.order.append(b.name); return b
    def uid(self):
        self.nstub += 1; return self.nstub

    def check_site(self, b, x, par):
        k = self.uid()
        b.e(f"s_cbranch_vccnz L_stub{k}")
        b.e(f"L_ret{k}:")
        self.stubs.e(f"L_stub{k}:")
        self.stubs.e(f"s_call_b64 {sr(S_RET,2)}, L_rare_{x}_{par}")
        self.stubs.e(f"s_branch L_ret{k}")

    def plan_mem(self, g):
        cap = [1 if i % 2 == 0 else 2 for i in range(32)]
        cap[15] = 0; cap[31] = 0
        place = {i: [] for i in range(32)}
        kd = [17, 19, 21, 23] if g == 4 else [19, 23]
        vd = [7, 9, 11, 13] if g == 4 else [9, 13]
        for i, gp in enumerate(kd): place[gp].append(('KD', i)); cap[gp] -= 2
        for i, gp in enumerate(vd): place[gp].append(('VD', i)); cap[gp] -= 2
        place[27].append(('QD',)); cap[27] -= 2
        items = [(16 + s, 30, ('K', s)) for s in range(8)]
        for j in range(8):
            for e in range(2): items.append((24 + j, 38 if j < 4 else 42, ('V', j, e)))
        pend = list(items)
        for t in range(16, 48):
            gp = t % 32
            while cap[gp] > 0:
                c = [it for it in pend if it[0] <= t]
                if not c: break
                it = min(c, key=lambda i: (i[1], i[0]))
                assert it[1] >= t, ("deadline miss", it, t)
                pend.remove(it); cap[gp] -= 1
                place[gp].append(it[2])
        assert not pend
        for gp in place:
            place[gp].sort(key=lambda it: 0 if it[0] in ('K', 'V') else 1)
        return place

    def sm_ops(self, gap, ph):
        ops = []
        s_par = ph % 2
        def elem(idx):
            if 0 <= idx < 16: return (1, idx, s_par, 'b0')
            if 16 <= idx < 32: return (0, idx - 16, s_par ^ 1, 'a1')
            if 32 <= idx < 48: return (1, idx - 32, s_par ^ 1, 'b1')
            return None
        x, e, par, tag = elem(gap + 1); ops.append((tag, opA(x, e, par)))
        if gap % 2 == 0:
            x, e, par, tag = elem(gap); ops.append((tag, opC(x, e // 2)))
        x, e, par, tag = elem(gap + 3); ops.append((tag, opF(x, e)))
        x, e, par, tag = elem(gap + 2); ops.append((tag, opE(x, e)))
        return ops

    def sm_stream(self, gaps, ph, tags):
        out = []
        for gp in gaps:
            ops = [t for tag, t in self.sm_ops(gp, ph) if tag in tags]
            ex = [t for t in ops if t.startswith('v_exp')]
            ot = [t for t in ops if not t.startswith('v_exp')]
            if ex and ot: out += ex + ot
            elif ex: out += ex + ["s_nop 0"]
            else: out += (["s_nop 0"] if ot else []) + ot
        return out

    def step(self, shape, ph):
        g = G[shape]
        b = Block(f"loop_{shape}_{ph}")
        b.e(f"L_loop_{shape}_{ph}:")
        place = self.plan_mem(g)
        free = {i: [] for i in range(32)}
        seq = []
        for gp in range(32):
            for it in place[gp]:
                if it[0] in ('K', 'V'): seq.append((gp, it))
        def count_after(need_items, wait_gap):
            lin = [(gp - 32, it) for gp, it in seq] + [(gp, it) for gp, it in seq]
            lin = [(t, it) for t, it in lin if t < wait_gap]
            last = max(max(i for i, (t, it) in enumerate(lin) if it == n) for n in need_items)
            return len(lin) - 1 - last
        wk = count_after([('K', s) for s in range(8)], 31)
        free[31].append(f"s_waitcnt lgkmcnt({wk})")
        wv0 = count_after([('V', j, e) for j in range(4) for e in range(2)], 7)
        free[7].append(f"s_waitcnt lgkmcnt({wv0})")
        wv1 = count_after([('V', j, e) for j in range(4, 8) for e in range(2)], 11)
        free[11].append(f"s_waitcnt lgkmcnt({wv1})")
        assert max(wk, wv0, wv1) <= 15
        if not X_NOVM: free[15].append(f"s_waitcnt vmcnt({4*g+2})")
        if not X_NOBAR: free[16].append("s_barrier")
        free[20].append(Q_PRE[0]); free[22].append(Q_PRE[1]); free[24].append(Q_PRE[2])
        free[28].append(Q_POST[0]); free[29].append(Q_POST[1])
        free[5].append(Q_POST[2]); free[6].append(Q_POST[3]); free[8].append(Q_POST[4]); free[9].append(Q_POST[5]); free[19].append(Q_POST[6])
        free[0].append(f"s_cmp_gt_i32 s{S_REM}, 0")
        free[1].append(f"s_cselect_b32 s{S_VUSE}, s{S_VOFF}, s{S_OOB}")
        free[2].append(f"s_cselect_b32 m0, s{S_M0V + (ph+3)%4}, s{S_TRASH}")
        free[3].append(f"s_sub_u32 s{S_KT}, s{S_VOFF}, 0x10000")
        free[4].append(f"s_sub_u32 s{S_VOFF}, s{S_VOFF}, 0x8000")
        free[10].append(f"s_cmp_gt_i32 s{S_REM}, 2")
        free[12].append(f"s_cselect_b32 s{S_KUSE}, s{S_KT}, s{S_OOB}")
        free[14].append(f"s_cselect_b32 m0, s{S_M0K + (ph+5)%4}, s{S_TRASH}")
        free[18].append(f"s_sub_u32 s{S_REM}, s{S_REM}, 1")
        free[30].append(f"s_cmp_ge_i32 s{S_REM}, -1")
        for gp in range(32):
            if gp < 8: b.e(mfma_q(0, gp, "0"))
            elif gp < 16: b.e(mfma_v(0, gp - 8))
            elif gp < 24: b.e(mfma_q(1, gp - 16, "0"))
            else: b.e(mfma_v(1, gp - 24))
            for t in free[gp]: b.e(t)
            for it in place[gp]:
                if X_NODMA and it[0] in ('KD', 'VD', 'QD'): continue
                if X_NOLDS and it[0] in ('K', 'V'): continue
                if it[0] == 'K': b.e(kread(it[1], (ph + 2) % 4 if gp >= 16 else (ph + 1) % 4))
                elif it[0] == 'V': b.e(vread(it[1], it[2], (ph + 1) % 4 if gp >= 16 else ph % 4))
                elif it[0] == 'KD': b.e(dma_k(shape, it[1]))
                elif it[0] == 'VD': b.e(dma_v(shape, it[1]))
                elif it[0] == 'QD': b.e(dma_q(ph))
            ops = self.sm_ops(gp, ph)
            if gp == 15:
                b.e(f"v_cmp_nge_f32 vcc, s{S_THR}, v{L+2*1+ph%2}")
            if gp == 31:
                b.e(f"v_cmp_nge_f32 vcc, s{S_THR}, v{L+2*0+(ph+1)%2}")
            for tag, t in ops: b.e(t)
            if gp == 15: self.check_site(b, 1, ph % 2)
            if gp == 31: self.check_site(b, 0, (ph + 1) % 2)
        b.e(f"s_cbranch_scc0 L_tail_{shape}_{(ph+1)%4}")
        if ph == 3: b.e(f"s_branch L_loop_{shape}_0")
        return b

    def dma_v_part(self, b, ph, shape):
        for t in Q_POST[2:]: b.e(t)
        b.e(f"""s_cmp_gt_i32 s{S_REM}, 0
                s_cselect_b32 s{S_VUSE}, s{S_VOFF}, s{S_OOB}
                s_cselect_b32 m0, s{S_M0V + (ph+3)%4}, s{S_TRASH}
                s_sub_u32 s{S_KT}, s{S_VOFF}, 0x10000
                s_sub_u32 s{S_VOFF}, s{S_VOFF}, 0x8000""")
        for i in range(G[shape]): b.e(dma_v(shape, i))
    def dma_k_part(self, ph, shape):
        return [f"s_cmp_gt_i32 s{S_REM}, 2",
                f"s_cselect_b32 s{S_KUSE}, s{S_KT}, s{S_OOB}",
                f"s_cselect_b32 m0, s{S_M0K + (ph+5)%4}, s{S_TRASH}",
                f"s_sub_u32 s{S_REM}, s{S_REM}, 1"] + [dma_k(shape, i) for i in range(G[shape])]
    def dma_q_part(self, dummy=False):
        if dummy:
            return [f"s_mov_b32 m0, s{S_TRASH}", f"s_mov_b32 s{S_QUSE}, s{S_OOB}", f"s_add_u32 s{S_QCNT}, s{S_QCNT}, 1", dma_q()]
        return Q_PRE + [Q_POST[0], dma_q(0), Q_POST[1]]

    def warm(self):
        N = S_N
        k = self.uid()
        o = [f"s_bitcmp1_b32 s{N+3}, 11", f"s_cbranch_scc0 L_wm{k}",
             f"s_cmp_eq_u32 s{S_HP}, 0", f"s_cbranch_scc0 L_wv{k}"]
        for u in range(4):
            o += [f"s_sub_u32 s{S_T0}, s{N+1}, {u*0x8000}", f"s_cmp_gt_i32 s{N+2}, {u}", f"s_cselect_b32 s{S_T0}, s{S_T0}, s{S_OOB}",
                  f"buffer_load_dword v{V_DUMMY}, v{V_WARM}, {sr(SRD_K,4)}, s{S_T0} offen"]
        o += [f"s_branch L_wm{k}", f"L_wv{k}:"]
        for u in range(3):
            o += [f"s_sub_u32 s{S_T0}, s{N+1}, {u*0x8000}", f"s_cmp_gt_i32 s{N+2}, {u}", f"s_cselect_b32 s{S_T0}, s{S_T0}, s{S_OOB}",
                  f"buffer_load_dword v{V_DUMMY}, v{V_WARM}, {sr(SRD_V,4)}, s{S_T0} offen"]
        o += [f"L_wm{k}:"]
        return o

    def pf_group(self, kind, u, N=S_N):
        k = self.uid()
        m0r = (S_M0K if kind == 'K' else S_M0V) + u
        d = dma_k if kind == 'K' else dma_v
        T = S_T0 + 4
        return [f"s_sub_u32 s{T}, s{N+1}, {u*0x8000}",
                f"s_cmp_gt_i32 s{N+2}, {u}",
                f"s_cselect_b32 s{T}, s{T}, s{S_OOB}",
                f"s_cselect_b32 m0, s{m0r}, s{S_TRASH}",
                f"s_bitcmp1_b32 s{N+3}, 10",
                f"s_cbranch_scc1 L_pfb{k}",
                d('A', 0, T), d('A', 1, T),
                f"s_branch L_pfe{k}",
                f"L_pfb{k}:",
                d('B', 0, T), d('B', 1, T), d('B', 2, T), d('B', 3, T),
                f"L_pfe{k}:"]

    def hookB(self, b, clear, wait_first, wait_norm):
        k = self.uid()
        b.e(f"""s_cmp_eq_u32 s{S_FIRST}, 0
                s_cbranch_scc1 L_hb{k}""")
        for kind, u in (('K', 2), ('V', 1), ('K', 3)):
            for t in self.pf_group(kind, u, S_J): b.e(t)
        b.e(f"""s_mov_b32 m0, s{S_TRASH}
                s_mov_b32 s{S_QUSE}, s{S_OOB}""")
        for _ in range(5): b.e(dma_q())
        if clear: b.e(f"s_mov_b32 s{S_FIRST}, 0")
        b.e(f"s_waitcnt vmcnt({wait_first})")
        b.e(f"s_branch L_hc{k}")
        b.e(f"L_hb{k}:")
        b.e(f"s_waitcnt vmcnt({wait_norm})")
        b.e(f"L_hc{k}:")

    def idle_step(self, shape):
        g = G[shape]
        ph = 3
        b = Block(f"idle_{shape}")
        b.e(f"L_idle_{shape}:")
        self.dma_v_part(b, ph, shape)
        self.hookB(b, shape == 'B', (16 if shape == 'A' else 0) + g + 3*g + 5, 4*g)
        b.e("s_barrier")
        for t in self.dma_k_part(ph, shape): b.e(t)
        for t in self.dma_q_part(True): b.e(t)
        return b

    def qreads(self, b, x):
        for s in range(8):
            b.e(f"ds_read_b128 {ar(AQ+32*x+4*s,4)}, v{P+8*x+s}")

    def maxtree(self, x):
        s0 = S + 16*x; t = 2 + 2*x
        o = [f"v_max3_f32 v{t}, v{s0}, v{s0+1}, v{s0+2}",
             f"v_max3_f32 v{t+1}, v{s0+3}, v{s0+4}, v{s0+5}"]
        for i in range(6, 14, 4):
            o += [f"v_max3_f32 v{t}, v{t}, v{s0+i}, v{s0+i+1}", f"v_max3_f32 v{t+1}, v{t+1}, v{s0+i+2}, v{s0+i+3}"]
        o += [f"v_max3_f32 v{t}, v{t}, v{s0+14}, v{s0+15}",
              f"v_max_f32 v{t}, v{t}, v{t+1}",
              f"v_mov_b32 v{t+1}, v{t}",
              "s_nop 1",
              f"v_permlane32_swap_b32 v{t}, v{t+1}",
              f"v_max_f32 v{t}, v{t}, v{t+1}",
              f"v_mul_f32 v{MC+x}, s{S_C}, v{t}"]
        return o

    def head(self, shape, f):
        g = G[shape]
        ph = (f - 1) % 4
        b = Block(f"head_{shape}_{f}")
        b.e(f"L_head_{shape}_{f}:")
        if shape == 'A' and f == 1:
            b.e(f"""s_cmp_eq_u32 s{S_FIRST}, 0
                    s_cbranch_scc1 L_hq1_skip
                    s_mov_b32 s{S_FIRST}, 0
                    s_waitcnt vmcnt({g + 3*g + 5 + g + 1})""")
            self.qreads(b, 0); self.qreads(b, 1)
            b.e("L_hq1_skip:")
        for s in range(8): b.e(kread(s, f % 4))
        b.e(mfma_z(0))
        self.dma_v_part(b, ph, shape)
        b.e(mfma_z(1))
        b.e(f"v_mov_b32 v{L+0+((f-1)%2)}, 0")
        b.e(f"v_mov_b32 v{L+2+((f-1)%2)}, 0")
        b.e(mfma_z(2))
        b.e("s_waitcnt lgkmcnt(0)")
        for s in range(8): b.e(mfma_q(0, s, vr(MJ, 16)))
        if shape == 'A' and f == 0:
            b.e(f"""s_cmp_eq_u32 s{S_FIRST}, 0
                    s_cbranch_scc1 L_hq_skip
                    s_waitcnt vmcnt({3*g})""")
            self.qreads(b, 1)
            b.e("s_waitcnt lgkmcnt(0)")
            b.e("L_hq_skip:")
        sma = self.sm_stream(range(13, 29), ph, ('a1',))
        rest = self.sm_stream(range(29, 32), ph, ('a1', 'b1'))
        valu = ["s_nop 5", "s_nop 4"] + self.maxtree(0) + sma
        qb = [mfma_q(1, s, vr(MJ, 16)) for s in range(8)]
        tmp = Block()
        vv = list(valu)
        for m in qb:
            tmp.e(m); used = 0
            while vv and used + cost(vv[0]) <= 6:
                t = vv.pop(0); tmp.e(t); used += cost(t)
        b.ext(tmp)
        if f == 0: self.hookB(b, True, g + 3*g + 5, 4*g)
        else: b.e(f"s_waitcnt vmcnt({4*g+1})")
        b.e("s_barrier")
        mem = [[kread(s, (f + 1) % 4)] for s in range(8)] + [self.dma_k_part(ph, shape)] + [self.dma_q_part(f == 0)]
        mem += [[vread(j, 0, f % 4), vread(j, 1, f % 4)] for j in range(8)]
        n1 = 12
        valu2 = vv[:n1] + self.maxtree(1) + vv[n1:] + rest
        weave(b, [mfma_z(i) for i in range(3, 8)], mem, valu2, budget=7, mem_per_gap=4)
        if WARM:
            for t in self.warm(): b.e(t)
        b.e("s_waitcnt lgkmcnt(0)")
        stamp(b)
        b.e(f"s_cmp_ge_i32 s{S_REM}, -1")
        b.e(f"s_cbranch_scc0 L_tail_{shape}_{f%4}")
        b.e(f"s_branch L_loop_{shape}_{f%4}")
        return b

    def pfsetup(self):
        N = S_N
        o = [f"s_lshl_b32 s{S_T0}, s{S_PAIR}, 16",
             f"s_bitcmp1_b32 s{N+3}, 10",
             f"s_cselect_b32 s{S_RING}, s{S_T0}, 0",
             f"s_cselect_b32 s{S_T0}, s{S_MBB}, s{S_MBA}"]
        for i in range(4):
            o.append(f"s_add_u32 s{S_M0K+i}, s{S_T0}, {i*8192}")
            o.append(f"s_add_u32 s{S_M0V+i}, s{S_T0}, {32768+i*8192}")
        return o

    def tail(self, shape, ph):
        g = G[shape]
        b = Block(f"tail_{shape}_{ph}")
        b.e(f"L_tail_{shape}_{ph}:")
        stamp(b)
        place = self.plan_mem(g)
        for gp in range(16):
            for it in place[gp]:
                if it[0] == 'V': b.e(vread(it[1], it[2], ph % 4))
        k = self.uid()
        b.e(f"""s_lshl_b32 s{S_T0}, s{S_Q2}, 4
                s_max_i32 s{S_T0}, s{S_T0}, s{S_QCNT}
                s_cmp_gt_i32 s{S_T0}, 1
                s_cbranch_scc0 L_nq{k}
                s_call_b64 {sr(S_RET,2)}, L_qrem_{ph}
                L_nq{k}:""")
        smb = self.sm_stream(range(0, 15), ph, ('b0',))
        for t in smb[:10]: b.e(t)
        b.e("s_waitcnt lgkmcnt(0)")
        pfs = self.pfsetup()
        weave(b, [mfma_v(0, j) for j in range(8)],
              [["s_barrier"] + pfs[:4], pfs[4:8], pfs[8:], self.pf_group('K', 0), [], [], self.pf_group('K', 1)], smb[10:], budget=8, mem_per_gap=1)
        b.e(f"v_cmp_nge_f32 vcc, s{S_THR}, v{L+2*1+ph%2}")
        b.e("s_nop 1")
        self.check_site(b, 1, ph % 2)
        ec = [f"v_mov_b32 v2, v{L+0+ph%2}", f"v_mov_b32 v3, v{L+0+ph%2}", f"v_mov_b32 v4, v{L+2+ph%2}", f"v_mov_b32 v5, v{L+2+ph%2}"] + self.epi_common(shape)
        weave(b, [mfma_v(1, j) for j in range(8)], [], ec, budget=6)
        b.e(f"s_branch L_epi_{shape}")
        return b

    def store_chunks(self, b, subs, scale_ops, extra):
        extra = list(extra)
        chunks = [(x, dh) for x in subs for dh in range(2)]
        R = S + 16
        WA = P + 8
        def reads(ci):
            o = []
            for kk in range(4):
                off = (ci % 2) * 4096 + kk * 1024
                if kk % 2 == 0: o.append(f"ds_read_b128 {vr(R+4*kk,4)}, v{STR} offset:{off}")
                else: o.append(f"ds_read2st64_b64 {vr(R+4*kk,4)}, v{E0} offset0:{off//512} offset1:{off//512}")
            return o
        def stores(ci):
            x, dh = chunks[ci]
            return [f"buffer_store_dwordx4 {vr(R+4*kk,4)}, v{OV+kk}, {sr(SRD_O,4)}, s{S_QOFF} offen offset:{x*256 + dh*128}{NT_O}" for kk in range(4)]
        nch = len(chunks)
        for ci in range(nch + 2):
            st = stores(ci - 2) if ci >= 2 else []
            if st: b.e(f"s_waitcnt lgkmcnt({8 if ci - 1 < nch else 0})")
            if ci < nch:
                x, dh = chunks[ci]
                n = 0
                for dbl in range(2):
                    db = 2*dh + dbl
                    for gq in range(4):
                        tb = P + 4 * (n % 2); X = S + 2 * n
                        for q in range(0, 4, 2):
                            for t in scale_ops(x, 16*db + 4*gq + q, tb + q): b.e(t)
                        b.e(f"v_cvt_pk_bf16_f32 v{X}, v{tb}, v{tb+1}")
                        b.e(f"v_cvt_pk_bf16_f32 v{X+1}, v{tb+2}, v{tb+3}")
                        if st and n % 2 == 0: b.e(st.pop(0))
                        elif extra and n % 4 == 1:
                            for t in extra.pop(0): b.e(t)
                        n += 1
            else:
                while extra:
                    for t in extra.pop(0): b.e(t)
            for t in st: b.e(t)
            if 1 <= ci <= nch:
                for kk in range(4):
                    off = ((ci - 1) % 2) * 4096 + kk * 1024
                    if kk % 2 == 0: b.e(f"ds_read_b128 {vr(R+4*kk,4)}, v{STR} offset:{off}")
                    else:
                        b.e(f"ds_read_b64 {vr(R+4*kk,2)}, v{STR} offset:{off+8}")
                        b.e(f"ds_read_b64 {vr(R+4*kk+2,2)}, v{STR} offset:{off}")
            if ci < nch:
                for n in range(8):
                    b.e(f"ds_write_b64 v{WA+n}, {vr(S+2*n,2)} offset:{(ci%2)*4096}")

    def epi_common(self, shape):
        J = S_J
        o = f"""s_and_b32 s{S_T0}, s{J+3}, 63
                v_and_b32 v6, 31, v{V_LANE}
                v_lshrrev_b32 v7, 5, v{V_LANE}
                v_lshlrev_b32 v{STW}, 7, v6
                v_bfe_u32 v{E0}, v{V_LANE}, 3, 1
                v_xor_b32 v7, v7, v{E0}
                v_lshl_add_u32 v{STW}, v7, 3, v{STW}
                v_and_b32 v6, 7, v{V_LANE}
                v_lshl_add_u32 v{STW}, v6, 4, v{STW}
                v_add_u32 v{STW}, s{S_STG}, v{STW}
                v_permlane32_swap_b32 v2, v3
                v_permlane32_swap_b32 v4, v5
                v_lshrrev_b32 v6, 3, v{V_LANE}
                v_and_b32 v7, 7, v{V_LANE}
                v_add_f32 v2, v2, v3
                v_add_f32 v4, v4, v5
                v_xor_b32 v{STR}, v6, v7
                v_lshlrev_b32 v{STR}, 4, v{STR}
                v_lshl_add_u32 v{STR}, v6, 7, v{STR}
                v_add_u32 v{STR}, s{S_STG}, v{STR}
                v_lshlrev_b32 v7, 4, v7
                v_lshl_add_u32 v7, v6, 12, v7
                v_mov_b32 v{E1}, s{S_OOB}""".split('\n')
        o = [t.strip() for t in o]
        for kk in range(4):
            o += [f"v_add_u32 v{E0}, {8*kk}, v6",
                  f"v_cmp_gt_u32 vcc, s{S_T0}, v{E0}",
                  f"v_add_u32 v{E0}, {kk*32768}, v7",
                  "s_nop 0",
                  f"v_cndmask_b32 v{OV+kk}, v{E1}, v{E0}, vcc"]
        if shape == 'A':
            o += ["v_rcp_f32 v2, v2", "v_rcp_f32 v4, v4"]
        else:
            o += [f"s_lshl_b32 s{S_T0}, s{S_PAIR}, 16",
                  f"s_lshl_b32 s{S_T0+1}, s{S_HP}, 14",
                  f"s_add_u32 s{S_T0}, s{S_T0}, s{S_T0+1}",
                  f"s_add_u32 s{S_T0}, s{S_T0}, 0x8000",
                  f"s_xor_b32 s{S_T0+1}, s{S_T0}, 0x10000",
                  f"v_lshlrev_b32 v6, 4, v{V_LANE}",
                  f"v_add_u32 v{XW}, s{S_T0}, v6",
                  f"v_add_u32 v{XR}, s{S_T0+1}, v6",
                  f"s_lshl_b32 s{S_T0}, s{S_W}, 9",
                  f"s_add_u32 s{S_T0}, s{S_T0}, 0x6000",
                  f"s_xor_b32 s{S_T0+1}, s{S_T0}, 0x400",
                  f"v_lshlrev_b32 v6, 3, v{V_LANE}",
                  f"v_add_u32 v{XM}, s{S_T0}, v6",
                  f"v_add_u32 v{XN}, s{S_T0+1}, v6"]
        return o

    def epilogue(self, shape):
        b = Block(f"epi_{shape}")
        b.e(f"L_epi_{shape}:")
        stamp(b)
        for n in range(8): b.e(f"v_xor_b32 v{P+8+n}, {n*16}, v{STW}")
        def ex(): return [self.pf_group('V', 0), self.pf_group('K', 2), self.pf_group('V', 1), self.pf_group('K', 3)]
        if shape == 'A':
            b.e("s_nop 0")
            self.store_chunks(b, (0, 1), lambda x, i, d: [f"v_pk_mul_f32 {vr(d,2)}, {vr(O+64*x+i,2)}, {vr(2+2*x,2)} op_sel_hi:[1,0]"], ex())
            b.e(f"s_mov_b32 s{S_WSEL}, 0")
            b.e("s_branch L_job")
        else:
            b.e(f"""s_cmp_eq_u32 s{S_PAIR}, 0
                    s_cbranch_scc0 L_epiB_1""")
            for own in range(2):
                oth = own ^ 1
                if own == 1: b.e("L_epiB_1:")
                b.e(f"v_mov_b32 v6, v{MC+oth}")
                b.e(f"v_mov_b32 v7, v{2+2*oth}")
                b.e("s_nop 7")
                b.e(f"ds_write_b64 v{XM}, v[6:7]")
                for i in range(16):
                    b.e(f"ds_write_b128 v{XW}, {vr(O+64*oth+4*i,4)} offset:{i*1024}")
                b.e("s_waitcnt lgkmcnt(0)")
                b.e("s_barrier")
                b.e(f"ds_read_b64 v[6:7], v{XN}")
                for i in range(16):
                    b.e(f"ds_read_b128 {vr(O+64*oth+4*i,4)}, v{XR} offset:{i*1024}")
                lo = 2 + 2*own
                b.e(f"""s_waitcnt lgkmcnt(15)
                        s_nop 0
                        s_waitcnt lgkmcnt(15)
                        v_max_f32 v{FO}, v{MC+own}, v6
                        v_sub_f32 v{FT}, v6, v{FO}
                        v_sub_f32 v{FO}, v{MC+own}, v{FO}
                        v_exp_f32 v{FT}, v{FT}
                        v_exp_f32 v{FO}, v{FO}
                        s_nop 0
                        v_mul_f32 v7, v7, v{FT}
                        v_fma_f32 v7, v{lo}, v{FO}, v7
                        v_rcp_f32 v7, v7
                        s_nop 0
                        v_mul_f32 v{FO}, v{FO}, v7
                        v_mul_f32 v{FT}, v{FT}, v7
                        s_waitcnt lgkmcnt(0)
                        s_barrier""")
                self.store_chunks(b, (own,), lambda x, i, d, own=own, oth=oth: [
                    f"v_pk_mul_f32 {vr(d,2)}, {vr(O+64*own+i,2)}, {vr(FO,2)} op_sel_hi:[1,0]",
                    f"v_pk_fma_f32 {vr(d,2)}, {vr(O+64*oth+i,2)}, {vr(FT,2)}, {vr(d,2)} op_sel_hi:[1,0,1]"], ex())
                b.e(f"s_mov_b32 s{S_WSEL}, 1")
                b.e("s_branch L_job")
        return b

    def rare(self, x, par):
        b = Block(f"rare_{x}_{par}")
        b.e(f"L_rare_{x}_{par}:")
        s0 = S + 16*x
        b.e("s_nop 15")
        b.e(f"v_max3_f32 v2, v{s0}, v{s0+1}, v{s0+2}")
        for i in range(3, 15, 2):
            b.e(f"v_max3_f32 v2, v2, v{s0+i}, v{s0+i+1}")
        b.e(f"v_max_f32 v2, v2, v{s0+15}")
        b.e("v_mov_b32 v3, v2")
        b.e("s_nop 1")
        b.e("v_permlane32_swap_b32 v2, v3")
        b.e("v_max_f32 v2, v2, v3")
        b.e(f"v_mul_f32 v2, s{S_C}, v2")
        b.e(f"v_max_f32 v2, v2, v{MC+x}")
        b.e(f"v_sub_f32 v3, v{MC+x}, v2")
        b.e("v_exp_f32 v3, v3")
        b.e(f"v_mov_b32 v{MC+x}, v2")
        b.e(f"v_mul_f32 v{L+2*x+par}, v3, v{L+2*x+(par^1)}")
        for i in range(64):
            b.e(f"v_mul_f32 v{O+64*x+i}, v3, v{O+64*x+i}")
        for k in range(8):
            b.e(f"v_fma_f32 v4, v{s0+2*k}, s{S_C}, -v{MC+x}")
            b.e(f"v_fma_f32 v5, v{s0+2*k+1}, s{S_C}, -v{MC+x}")
            b.e("v_exp_f32 v4, v4")
            b.e("v_exp_f32 v5, v5")
            b.e("s_nop 0")
            b.e(f"v_add_f32 v{L+2*x+par}, v{L+2*x+par}, v4")
            b.e(f"v_add_f32 v{L+2*x+par}, v{L+2*x+par}, v5")
            b.e(f"v_cvt_pk_bf16_f32 v{P+8*x+k}, v4, v5")
        b.e("s_nop 1")
        b.e(f"s_setpc_b64 {sr(S_RET,2)}")
        return b

    def prologue(self):
        b = Block("prologue")
        b.e(f"""s_cmp_ge_u32 s2, 256
                s_cbranch_scc1 L_end
                s_load_dwordx4 s[52:55], s[0:1], 0
                s_load_dwordx2 s[56:57], s[0:1], 16
                s_load_dwordx2 s[58:59], s[0:1], 32
                s_getpc_b64 {sr(S_TAB,2)}""")
        b.e("L_pc:")
        b.e(f"""s_add_u32 s{S_TAB}, s{S_TAB}, jobtab-L_pc
                s_addc_u32 s{S_TAB+1}, s{S_TAB+1}, 0
                v_lshrrev_b32 v1, 6, v0
                v_and_b32 v{V_LANE}, 63, v0
                v_readfirstlane_b32 s{S_W}, v1
                v_lshlrev_b32 v2, 7, v0
                s_getpc_b64 s[34:35]
                {'global_load_dword v13, v2, s[34:35]' if CODEWARM else 's_nop 0'}
                v_add_u32 v2, 0x8000, v2
                {'global_load_dword v13, v2, s[34:35]' if CODEWARM else 's_nop 0'}
                s_lshr_b32 s{S_PAIR}, s{S_W}, 1
                s_and_b32 s{S_HP}, s{S_W}, 1
                s_lshl_b32 s3, s2, 7
                s_lshl_b32 s4, s{S_PAIR}, 6
                s_add_u32 s3, s3, s4
                s_add_u32 s{S_TAB}, s{S_TAB}, s3
                s_addc_u32 s{S_TAB+1}, s{S_TAB+1}, 0
                s_load_dwordx4 {sr(S_N,4)}, {sr(S_TAB,2)}, 0
                s_load_dwordx8 {sr(S_JT,8)}, {sr(S_TAB,2)}, 16
                s_mov_b32 s{S_C}, {C_SCALE:#x}
                s_mov_b32 s{S_THR}, {THR:#x}
                s_mov_b32 s{S_OOB}, 0x80000000
                s_mov_b32 s{S_TRASH}, 0x3c000
                s_lshl_b32 s{S_STG}, s{S_PAIR}, 16
                s_lshl_b32 s3, s{S_HP}, 13
                s_add_u32 s{S_STG}, s{S_STG}, s3
                s_add_u32 s{S_STG}, s{S_STG}, 0xc000
                s_lshl_b32 s{S_MBA}, s{S_W}, 11
                s_lshl_b32 s{S_MBB}, s{S_PAIR}, 16
                s_lshl_b32 s3, s{S_HP}, 12
                s_add_u32 s{S_MBB}, s{S_MBB}, s3""")
        b.e(f"""v_lshrrev_b32 v5, 4, v{V_LANE}
                v_and_b32 v6, 15, v{V_LANE}
                v_xor_b32 v7, v6, v5
                v_lshlrev_b32 v7, 4, v7
                v_lshl_add_u32 v2, v5, 10, v7
                v_lshl_add_u32 v{DQ}, v5, 12, v7
                v_xor_b32 v{DQ+1}, 64, v{DQ}
                v_xor_b32 v{DQ+2}, 0x80, v{DQ}
                v_xor_b32 v{DQ+3}, 0xc0, v{DQ}
                v_lshrrev_b32 v4, 1, v{V_LANE}
                v_and_b32 v{V_WARM}, 1, v{V_LANE}
                v_lshlrev_b32 v{V_WARM}, 7, v{V_WARM}
                v_lshl_add_u32 v{V_WARM}, v4, 10, v{V_WARM}
                v_lshlrev_b32 v7, 2, v5
                v_xor_b32 v7, v6, v7
                v_lshlrev_b32 v7, 4, v7
                v_lshl_add_u32 v3, v5, 10, v7""")
        for sh in 'AB':
            b.e(f"s_lshl_b32 s5, s{S_W}, 1" if sh == 'A' else f"s_lshl_b32 s5, s{S_HP}, 2")
            for i in range(G[sh]):
                b.e(f"""s_add_u32 s3, s5, {i}
                        s_and_b32 s4, s3, 3
                        s_lshl_b32 s4, s4, 6
                        s_lshl_b32 s3, s3, 12
                        s_sub_u32 s3, s3, {i*1024}
                        v_xor_b32 v{DKR[sh][i]}, s4, v2
                        v_add_u32 v{DKR[sh][i]}, s3, v{DKR[sh][i]}
                        v_add_u32 v{DVR[sh][i]}, s3, v3""")
        b.e(f"""s_waitcnt lgkmcnt(0)
                s_mov_b32 s{SRD_Q}, s52
                s_mov_b32 s{SRD_Q+1}, s53
                s_mov_b32 s{SRD_Q+2}, {QBYTES}
                s_mov_b32 s{SRD_Q+3}, 0x00020000
                s_mov_b32 s{SRD_K}, s54
                s_mov_b32 s{SRD_K+1}, s55
                s_mov_b32 s{SRD_K+2}, {KBYTES}
                s_mov_b32 s{SRD_K+3}, 0x00020000
                s_mov_b32 s{SRD_V}, s56
                s_mov_b32 s{SRD_V+1}, s57
                s_mov_b32 s{SRD_V+2}, {KBYTES}
                s_mov_b32 s{SRD_V+3}, 0x00020000
                s_mov_b32 s{SRD_O}, s58
                s_mov_b32 s{SRD_O+1}, s59
                s_mov_b32 s{SRD_O+2}, {QBYTES}
                s_mov_b32 s{SRD_O+3}, 0x00020000""")
        if STAMPS:
            b.e(f"""s_load_dwordx2 s[84:85], s[0:1], 48
                    s_waitcnt lgkmcnt(0)
                    s_mov_b32 s86, 0x1000000
                    s_mov_b32 s87, 0x00020000
                    s_lshl_b32 s82, s2, 2
                    s_add_u32 s82, s82, s{S_W}
                    s_lshl_b32 s82, s82, 8""")
            stamp(b, True)
            stamp(b)
        if DBG:
            b.e(f"""s_load_dwordx2 s[84:85], s[0:1], 40
                    s_memrealtime s[80:81]
                    s_memtime s[82:83]
                    s_waitcnt lgkmcnt(0)
                    s_mov_b32 s86, 256
                    s_mov_b32 s87, 0x00020000
                    s_not_b32 s80, s80
                    v_mov_b32 v6, s80
                    v_mov_b32 v7, 0
                    buffer_atomic_umax v6, v7, s[84:87], 0 offen""")
        b.e(f"""s_mov_b32 s{S_J+3}, 0
                s_mov_b32 s{S_FIRST}, 1""")
        for t in self.pfsetup(): b.e(t)
        for t in self.pf_group('K', 0): b.e(t)
        self.qstate(b)
        b.e(f"""s_and_b32 s{S_T0}, s{S_N+3}, 0x600
                s_cmp_eq_u32 s{S_T0}, 0x200
                s_cbranch_scc1 L_noq""")
        b.e(f"s_call_b64 {sr(S_RET,2)}, L_qrem_0")
        b.e("L_noq:")
        for i in range(4): b.e(f"v_accvgpr_write_b32 a{AZ+i}, 0")
        b.e(f"""v_mov_b32 v{V_M16}, 0xffff
                v_and_b32 v6, 31, v{V_LANE}
                v_lshrrev_b32 v2, 5, v{V_LANE}
                v_lshlrev_b32 v3, 2, v2
                v_sub_u32 v3, v3, v6
                v_mov_b32 v4, {NEGBIG:#x}""")
        for r in range(16):
            kk = 8*(r//4) + r % 4
            b.e(f"v_cmp_lt_i32 vcc, {-kk}, v3")
            b.e("s_nop 1")
            b.e(f"v_cndmask_b32 v{MASK+r}, 0, v4, vcc")
        b.e("""v_and_b32 v5, 15, v6
               v_xor_b32 v5, v5, v2
               v_lshlrev_b32 v5, 4, v5
               v_lshl_add_u32 v5, v6, 8, v5""")
        for s in range(8):
            b.e(f"v_xor_b32 v{KADDR+s}, {32*s}, v5")
        b.e(f"""v_bfe_u32 v5, v{V_LANE}, 2, 2
                v_lshl_add_u32 v6, v2, 2, v5
                v_lshlrev_b32 v6, 8, v6
                v_lshl_add_u32 v6, v5, 6, v6
                v_bfe_u32 v7, v{V_LANE}, 4, 1
                v_lshl_add_u32 v6, v7, 5, v6
                v_and_b32 v7, 3, v{V_LANE}
                v_lshl_add_u32 v6, v7, 3, v6""")
        for db in range(4):
            b.e(f"v_xor_b32 v{VADDR+db}, {64*db}, v6")
        b.e(f"""s_and_b32 s{S_T0}, s{S_N+3}, 0x600
                s_cmp_eq_u32 s{S_T0}, 0
                s_cselect_b32 s{S_WSEL}, 2, 3""")
        return b

    def qstate(self, b):
        N = S_N
        b.e(f"""s_lshl_b32 s{S_T0}, s{S_HP}, 9
                s_add_u32 s{S_QSO}, s{N}, s{S_T0}
                s_lshl_b32 s{S_T0}, s{S_PAIR}, 8
                s_add_u32 s{S_T0+1}, s{S_QSO}, s{S_T0}
                s_lshl_b32 s{S_T0}, s{S_W}, 13
                s_add_u32 s{S_T0+2}, s{S_T0}, 0x20000
                s_add_u32 s{S_QM02}, s{S_T0}, 0x10000
                s_lshl_b32 s{S_T0}, s{S_HP}, 14
                s_add_u32 s{S_T0+5}, s{S_T0}, 0x20000
                s_add_u32 s{S_T0+6}, s{S_T0}, 0x22000
                s_lshl_b32 s{S_T0}, s{S_PAIR}, 13
                s_add_u32 s{S_T0+7}, s{S_T0+5}, s{S_T0}
                s_add_u32 s{S_QSO2}, s{S_QSO}, 256
                s_bitcmp1_b32 s{N+3}, 10
                s_cselect_b32 s{S_QSO}, s{S_T0+1}, s{S_QSO}
                s_cselect_b32 s{S_QST}, s{S_T0+5}, s{S_T0+2}
                s_cselect_b32 s{S_QST2}, s{S_T0+6}, s{S_QM02}
                s_cselect_b32 s{S_QM0}, s{S_T0+7}, s{S_T0+2}
                s_cselect_b32 s{S_QMADJ}, s{S_T0+7}, s{S_QM02}
                s_cselect_b32 s{S_QCNT}, 9, 17
                s_cselect_b32 s{S_QADJV}, 0, {(256 - 131072) & 0xffffffff:#x}
                s_cselect_b32 s{S_Q2}, 0, 1
                s_lshr_b32 s{S_T0}, s{S_J+3}, 10
                s_and_b32 s{S_Q2}, s{S_Q2}, s{S_T0}
                s_cmp_eq_u32 s{S_Q2}, 1
                s_cselect_b32 s{S_QCNT}, 9, s{S_QCNT}
                s_cselect_b32 s{S_QADJV}, 0, s{S_QADJV}
                s_cselect_b32 s{S_QMADJ}, s{S_QM0}, s{S_QMADJ}
                s_bitcmp1_b32 s{N+3}, 11
                s_cselect_b32 s{S_QCNT}, s{S_QCNT}, 0
                s_cselect_b32 s{S_Q2}, s{S_Q2}, 0""")

    def qrem(self):
        b = Block("qrem")
        for i in range(4):
            b.e(f"L_qrem_{i}:")
            for t in Q_POST[2:]: b.e(t)
            b.e(f"""s_cmp_gt_i32 s{S_QCNT}, 0
                    s_cbranch_scc0 L_qrem_done
                    s_mov_b32 s{S_QUSE}, s{S_QSO}
                    s_mov_b32 m0, s{S_QM0}""")
            b.e(Q_POST[0])
            b.e(dma_q(i))
            b.e(Q_POST[1])
        b.e("s_branch L_qrem_0")
        b.e("L_qrem_done:")
        b.e(f"""s_cmp_eq_u32 s{S_Q2}, 0
                s_cbranch_scc1 L_qrem_ret
                s_mov_b32 s{S_Q2}, 0
                s_mov_b32 s{S_QSO}, s{S_QSO2}
                s_mov_b32 s{S_QM0}, s{S_QM02}
                s_mov_b32 s{S_QMADJ}, s{S_QM02}
                s_mov_b32 s{S_QCNT}, 9
                s_branch L_qrem_0
                L_qrem_ret:""")
        b.e(f"s_setpc_b64 {sr(S_RET,2)}")
        return b

    def jobstart(self):
        b = Block("jobstart")
        J = S_J
        b.e("L_job:")
        b.e(f"""s_bitcmp1_b32 s{S_N+3}, 11
                s_cbranch_scc0 L_end""")
        for i in range(8):
            b.e(f"v_and_or_b32 v{P+i}, v{KADDR+i}, v{V_M16}, s{S_QST}")
            b.e(f"v_and_or_b32 v{P+8+i}, v{KADDR+i}, v{V_M16}, s{S_QST2}")
        b.e(f"""s_mov_b64 {sr(J,2)}, {sr(S_N,2)}
                s_mov_b64 {sr(J+2,2)}, {sr(S_N+2,2)}
                s_mov_b64 {sr(S_N,2)}, {sr(S_JT,2)}
                s_mov_b64 {sr(S_N+2,2)}, {sr(S_JT+2,2)}
                s_mov_b64 {sr(S_JT,2)}, {sr(S_JT+4,2)}
                s_mov_b64 {sr(S_JT+2,2)}, {sr(S_JT+6,2)}
                s_mov_b64 {sr(S_JT+6,2)}, 0
                s_lshl_b32 s{S_T0}, s{S_HP}, 9
                s_add_u32 s{S_QOFF}, s{J}, s{S_T0}""")
        for i in range(8):
            b.e(f"v_and_or_b32 v{KADDR+i}, v{KADDR+i}, v{V_M16}, s{S_RING}")
        for i in range(4):
            b.e(f"v_and_or_b32 v{VADDR+i}, v{VADDR+i}, v{V_M16}, s{S_RING}")
        b.e(f"""s_bitcmp1_b32 s{J+3}, 8
                s_cselect_b32 s{S_T0}, -1, 0""")
        for r in range(16):
            b.e(f"v_and_b32 v{MJ+r}, s{S_T0}, v{MASK+r}")
        b.e(f"""s_sub_u32 s{S_REM}, s{J+2}, 2
                s_sub_u32 s{S_VOFF}, s{J+1}, 0x10000
                s_cmp_ge_u32 s{S_WSEL}, 2
                s_cbranch_scc1 L_js_first""")
        self.qstate(b)
        b.e(f"""s_cmp_eq_u32 s{S_WSEL}, 0
                s_cbranch_scc1 L_js_w0
                s_waitcnt vmcnt(18)
                L_js_w0:
                s_waitcnt vmcnt(26)
                s_barrier""")
        stamp(b)
        self.qreads(b, 0)
        self.qreads(b, 1)
        b.e("s_branch L_js_go")
        b.e("L_js_first:")
        b.e(f"""s_cmp_eq_u32 s{S_WSEL}, 2
                s_cbranch_scc1 L_js_w2
                s_waitcnt vmcnt(0)
                L_js_w2:
                s_waitcnt vmcnt(8)
                s_barrier""")
        stamp(b)
        self.qreads(b, 0)
        self.qreads(b, 1)
        for kind, u in (('K', 1), ('V', 0)):
            for t in self.pf_group(kind, u, S_J): b.e(t)
        b.e(f"s_call_b64 {sr(S_RET,2)}, L_qrem_0")
        self.qstate(b)
        b.e("L_js_go:")
        stamp(b)
        b.e(f"""s_bitcmp1_b32 s{J+3}, 10
                s_cbranch_scc1 L_pre_B""")
        return b

    def pre(self, shape):
        J = S_J
        b = Block(f"pre_{shape}")
        b.e(f"L_pre_{shape}:")
        b.e(f"s_bitcmp1_b32 s{J+3}, 9")
        b.e(f"s_cbranch_scc0 L_head_{shape}_0")
        return b

    def build(self, wg):
        pro = self.prologue()
        self.add(pro)
        self.add(self.jobstart())
        for shape in 'AB':
            self.add(self.pre(shape))
            self.add(self.idle_step(shape))
            self.add(self.head(shape, 1))
            self.add(self.head(shape, 0))
            al = Block(f"align_{shape}"); al.e(".p2align 6"); self.add(al)
            for ph in range(4): self.add(self.step(shape, ph))
            for ph in range(4): self.add(self.tail(shape, ph))
            self.add(self.epilogue(shape))
        self.add(self.qrem())
        for x in range(2):
            for par in range(2): self.add(self.rare(x, par))
        self.add(self.stubs)
        end = Block("end"); end.e("L_end:")
        if STAMPS:
            end.e("s_cmp_ge_u32 s2, 256"); end.e("s_cbranch_scc1 L_end2")
            stamp(end); end.e("s_waitcnt vmcnt(0)"); stamp(end); stamp(end, True)
            end.e("L_end2:")
        if DBG:
            end.e("s_cmp_ge_u32 s2, 256"); end.e("s_cbranch_scc1 L_end2")
            end.e("""s_waitcnt vmcnt(0)
                     s_memrealtime s[80:81]
                     s_memtime s[98:99]
                     s_waitcnt lgkmcnt(0)
                     s_sub_u32 s98, s98, s82
                     v_mov_b32 v6, s80
                     v_mov_b32 v7, 4
                     buffer_atomic_umax v6, v7, s[84:87], 0 offen
                     v_mov_b32 v5, s98
                     v_mov_b32 v4, 8
                     buffer_atomic_umax v5, v4, s[84:87], 0 offen""")
            end.e("L_end2:")
        end.e("s_endpgm"); self.add(end)
        B = self.blocks
        paths = []
        for sh in 'AB':
            lp = [f"loop_{sh}_{p}" for p in range(4)]
            paths.append(["prologue", "jobstart", f"pre_{sh}", f"head_{sh}_0"] + lp + lp)
            paths.append([f"pre_{sh}", f"idle_{sh}", f"head_{sh}_1"] + lp[1:] + lp)
            for ph in range(4):
                paths.append([lp[(ph-2) % 4], lp[(ph-1) % 4], f"tail_{sh}_{ph}", f"epi_{sh}", "jobstart"])
            paths.append([f"head_{sh}_0", f"tail_{sh}_0", f"epi_{sh}"])
            paths.append([f"head_{sh}_1", f"tail_{sh}_1", f"epi_{sh}"])
        paths.append(["qrem"])
        for x in range(2):
            for par in range(2): paths.append([f"rare_{x}_{par}", "loop_A_0"])
        nprob = 0
        for p in paths:
            for skip in (False, True):
                seq = sum((B[n].ins for n in p), [])
                if skip: seq = prune_forward_skips(seq)
                for pr in check_hazards(seq, "+".join(p)):
                    print("HAZARD", pr, file=sys.stderr); nprob += 1
        assert nprob == 0
        txt = ""
        for n in self.order: txt += B[n].text()
        return txt

def prune_forward_skips(seq):
    out = []; i = 0
    labels = {ins.text[:-1]: k for k, ins in enumerate(seq) if ins.kind == 'label' and ins.text.endswith(':')}
    while i < len(seq):
        ins = seq[i]; out.append(ins)
        if ins.op.startswith('s_cbranch_scc'):
            tgt = ins.ops[0]
            if tgt in labels and labels[tgt] > i and not tgt.startswith(('L_tail', 'L_loop', 'L_head', 'L_pre', 'L_end', 'L_epi')):
                i = labels[tgt]; continue
        i += 1
    return out

def table(wg):
    CU = sched.CU
    words = []
    for w in range(256):
        ent = [[], []]
        assert len(wg[w]) <= 3
        for (seq, kvh, kind, b, N) in wg[w]:
            s0, Ls = CU[seq], CU[seq+1] - CU[seq]
            def q(bb): return ((s0 + 32*bb) * 16 + kvh * 4) * 256
            def kv(t): return ((s0 + 32*t) * 4 + kvh) * 256
            def nv(bb): return max(0, min(32, Ls - 32*bb))
            if kind == 'A':
                ent[0] += [q(b), kv(b+1), N, nv(b) | 1 << 8 | 1 << 9 | 1 << 11]
                ent[1] += [q(b+1), kv(b+1), N, nv(b+1) | 1 << 8 | 1 << 11]
            else:
                n = b + 1
                assert n >= 2 and N == (n + 1) // 2
                n0 = n - N
                d = N - n0
                ent[0] += [q(b), kv(b), N, nv(b) | 1 << 8 | 1 << 10 | 1 << 11]
                ent[1] += [q(b), kv(n0 - 1 + d), N, nv(b) | d << 9 | 1 << 10 | 1 << 11]
        for p in range(2):
            words += ent[p] + [0] * (16 - len(ent[p]))
    return words

THRB, OVH = 32, 4.0
def main(out):
    wg, st = sched.build(THRB, OVH)
    g = Gen()
    body = g.build(wg)
    hdr = open(f"cdna_kernels/{NAME}.s.ref").read().split("; Override launch")[0]
    s = hdr
    s += f"; @launch grid=(256,1,1) block=(256,1,1) lds={LDS_BYTES}\n"
    s += f""".amdgcn_target "amdgcn-amd-amdhsa--gfx950"
.text
.globl {NAME}_kernel
.p2align 8
.type {NAME}_kernel,@function
{NAME}_kernel:
"""
    s += body
    s += ".p2align 6\n.type jobtab,@object\njobtab:\n"
    w = table(wg)
    for i in range(0, len(w), 8):
        s += ".long " + ", ".join(f"{x:#x}" for x in w[i:i+8]) + "\n"
    s += f".size jobtab, {len(w)*4}\n"
    s += f""".section .rodata,"a"
.p2align 6
.amdhsa_kernel {NAME}_kernel
  .amdhsa_next_free_vgpr 392
  .amdhsa_next_free_sgpr 102
  .amdhsa_accum_offset 256
  .amdhsa_group_segment_fixed_size 0
  .amdhsa_kernarg_size 56
  .amdhsa_user_sgpr_count 2
  .amdhsa_user_sgpr_kernarg_segment_ptr 1
  .amdhsa_system_sgpr_workgroup_id_x 1
.end_amdhsa_kernel
"""
    open(out, "w").write(s)

if __name__ == "__main__":
    args = [a for a in sys.argv[1:] if not a.startswith('-')]
    if '-stamps' in sys.argv: STAMPS = True
    for a in sys.argv[1:]:
        if a.startswith('-D'):
            k, v = a[2:].split('=')
            globals()[k] = (' nt' if v == '1' else '') if k.startswith('NT_') else eval(v)
    main(args[0] if args else f"cdna_kernels/{NAME}.s")
```

```python
import sys, struct, math
from asmlib import *
import sched

NAME = "standalone__ragged_sequences_varlen_flash_attn__ragged"
T_TOK = 7180
QBYTES = T_TOK * 16 * 256
KBYTES = T_TOK * 4 * 256
def f32(x): return struct.unpack('<I', struct.pack('<f', x))[0]
C_SCALE = f32(math.log2(math.e) / math.sqrt(128.0))
THR = f32(2.0 ** 40)
NEGBIG = f32(-1.0e30)
LDS_BYTES = 163840
NT_Q = ' nt'; NT_KV = ''; NT_O = ' nt'
WARM = False
CODEWARM = False
DBG = False
NT_PF = ' nt'
X_NOST = False; X_NOSTG = False; X_NOPF = False; X_NOBAR = False; X_NOVM = False; X_NODMA = False; X_NOLDS = False; X_NOSALU = False

DKR = {'A': [0, 1], 'B': [48, 49, 50, 51]}
DVR = {'A': [78, 79], 'B': [52, 53, 54, 55]}
DQ = 8
V_WARM = 12
V_DUMMY = 13
V_M16 = 14; V_LANE = 15
MASK = 16; MJ = 32
VADDR = 56; KADDR = 60
MC = 68; L = 70; TT = 74
P = 80; S = 96; O = 128
AQ = 0; AK = 64; AV = 96; AZ = 128
OV = MJ; STW = MJ + 4; STR = MJ + 5; XW = MJ + 6; XR = MJ + 7; XM = MJ + 8; XN = MJ + 9; E0 = MJ + 10; E1 = MJ + 11; FO = MJ + 12; FT = MJ + 14
S_FIRST, S_WSEL, S_Q2, S_QSO2, S_QM02 = 3, 4, 5, 6, 7
SRD_Q, SRD_K, SRD_V, SRD_O = 8, 12, 16, 20
S_C, S_THR, S_OOB, S_W, S_PAIR, S_HP = 24, 25, 26, 27, 28, 29
S_RET = 30; S_TAB = 32; S_J = 36
S_QOFF, S_VOFF, S_REM, S_KUSE, S_VUSE, S_KT, S_QCNT, S_QSO, S_QM0, S_QUSE = range(40, 50)
S_T0 = 50
S_M0K = 60; S_M0V = 64; S_RING = 68; S_QADJ = 69; S_QADJV = 70; S_QMADJ = 71
S_N = 72; S_TRASH = 76; S_QST = 77; S_STG = 78; S_QST2 = 79
S_JT = 88; S_MBA = 96; S_MBB = 97

def vr(b, n): return f"v[{b}:{b+n-1}]"
def ar(b, n): return f"a[{b}:{b+n-1}]"
def sr(b, n): return f"s[{b}:{b+n-1}]"
G = {'A': 2, 'B': 4}

def mfma_q(x, s, first_c):
    c = first_c if s == 0 else vr(S + 16*x, 16)
    return f"v_mfma_f32_32x32x16_bf16 {vr(S+16*x,16)}, {ar(AK+4*s,4)}, {ar(AQ+32*x+4*s,4)}, {c}"
def mfma_v(x, j):
    u, db = j // 4, j % 4
    o = vr(O + 64*x + 16*db, 16)
    return f"v_mfma_f32_32x32x16_bf16 {o}, {ar(AV+4*j,4)}, {vr(P+8*x+4*u,4)}, {o}"
def mfma_z(i):
    return f"v_mfma_f32_32x32x16_bf16 {vr(O+16*i,16)}, {ar(AZ,4)}, {ar(AZ,4)}, 0"
def kread(s, slot):
    return f"ds_read_b128 {ar(AK+4*s,4)}, v{KADDR+s} offset:{slot*8192}"
def vread(j, e, slot):
    u, db = j // 4, j % 4
    return f"ds_read_b64_tr_b16 {ar(AV+4*j+2*e,2)}, v{VADDR+db} offset:{32768 + slot*8192 + (16*u+8*e)*256}"
def dma_k(sh, i, suse=S_KUSE):
    return f"buffer_load_dwordx4 v{DKR[sh][i]}, {sr(SRD_K,4)}, s{suse} offen offset:{i*1024}{NT_KV if suse == S_KUSE else NT_PF} lds"
def dma_v(sh, i, suse=S_VUSE):
    return f"buffer_load_dwordx4 v{DVR[sh][i]}, {sr(SRD_V,4)}, s{suse} offen offset:{i*1024}{NT_KV if suse == S_VUSE else NT_PF} lds"
def dma_q(i=0):
    return f"buffer_load_dwordx4 v{DQ+i}, {sr(SRD_Q,4)}, s{S_QUSE} offen{NT_Q} lds"
Q_PRE = [f"s_cmp_gt_i32 s{S_QCNT}, 0",
         f"s_cselect_b32 s{S_QUSE}, s{S_QSO}, s{S_OOB}",
         f"s_cselect_b32 m0, s{S_QM0}, s{S_TRASH}"]
Q_POST = [f"s_add_u32 s{S_QSO}, s{S_QSO}, 0x4000",
          f"s_add_u32 s{S_QM0}, s{S_QM0}, 0x400",
          f"s_sub_u32 s{S_QCNT}, s{S_QCNT}, 1",
          f"s_cmp_eq_u32 s{S_QCNT}, 8",
          f"s_cselect_b32 s{S_QADJ}, s{S_QADJV}, 0",
          f"s_cselect_b32 s{S_QM0}, s{S_QMADJ}, s{S_QM0}",
          f"s_add_u32 s{S_QSO}, s{S_QSO}, s{S_QADJ}"]
def opF(x, e): return f"v_fma_f32 v{TT+e%4}, v{S+16*x+e}, s{S_C}, -v{MC+x}"
def opE(x, e): return f"v_exp_f32 v{TT+e%4}, v{TT+e%4}"
def opA(x, e, par):
    src = L + 2*x + (par ^ 1) if e == 0 else L + 2*x + par
    return f"v_add_f32 v{L+2*x+par}, v{src}, v{TT+e%4}"
def opC(x, k): return f"v_cvt_pk_bf16_f32 v{P+8*x+k}, v{TT+(2*k)%4}, v{TT+(2*k+1)%4}"

STAMPS = False
def stamp(b, real=False):
    if not STAMPS: return
    b.e(f"""{'s_memrealtime' if real else 's_memtime'} s[80:81]
            s_waitcnt lgkmcnt(0)
            v_mov_b32 v6, s80
            v_mov_b32 v7, s82
            s_add_u32 s82, s82, 4
            buffer_store_dword v6, v7, s[84:87], 0 offen""")

def cost(t):
    op = t.split()[0]
    if op.endswith(':'): return 0
    if op.startswith('v_exp') or op.startswith('v_rcp') or op.startswith('buffer'): return 2
    if op == 's_nop': return int(t.split()[1]) + 1
    return 1

def weave(b, mfmas, mem, valu, budget=6, mem_per_gap=2):
    mem = list(mem); valu = list(valu)
    for m in mfmas:
        b.e(m)
        used = 0
        for _ in range(mem_per_gap):
            if mem:
                it = mem.pop(0)
                for t in it: b.e(t); used += cost(t)
        while valu and used + cost(valu[0]) <= budget:
            t = valu.pop(0); b.e(t); used += cost(t)
    for it in mem:
        for t in it: b.e(t)
    for t in valu: b.e(t)

class Gen:
    def __init__(self):
        self.blocks = {}
        self.order = []
        self.stubs = Block("stubs")
        self.nstub = 0
    def add(self, b):
        self.blocks[b.name] = b; self.order.append(b.name); return b
    def uid(self):
        self.nstub += 1; return self.nstub

    def check_site(self, b, x, par):
        k = self.uid()
        b.e(f"s_cbranch_vccnz L_stub{k}")
        b.e(f"L_ret{k}:")
        self.stubs.e(f"L_stub{k}:")
        self.stubs.e(f"s_call_b64 {sr(S_RET,2)}, L_rare_{x}_{par}")
        self.stubs.e(f"s_branch L_ret{k}")

    def plan_mem(self, g):
        cap = [1 if i % 2 == 0 else 2 for i in range(32)]
        cap[15] = 0; cap[31] = 0
        place = {i: [] for i in range(32)}
        kd = [17, 19, 21, 23] if g == 4 else [19, 23]
        vd = [7, 9, 11, 13] if g == 4 else [9, 13]
        for i, gp in enumerate(kd): place[gp].append(('KD', i)); cap[gp] -= 2
        for i, gp in enumerate(vd): place[gp].append(('VD', i)); cap[gp] -= 2
        place[27].append(('QD',)); cap[27] -= 2
        items = [(16 + s, 30, ('K', s)) for s in range(8)]
        for j in range(8):
            for e in range(2): items.append((24 + j, 38 if j < 4 else 42, ('V', j, e)))
        pend = list(items)
        for t in range(16, 48):
            gp = t % 32
            while cap[gp] > 0:
                c = [it for it in pend if it[0] <= t]
                if not c: break
                it = min(c, key=lambda i: (i[1], i[0]))
                assert it[1] >= t, ("deadline miss", it, t)
                pend.remove(it); cap[gp] -= 1
                place[gp].append(it[2])
        assert not pend
        for gp in place:
            place[gp].sort(key=lambda it: 0 if it[0] in ('K', 'V') else 1)
        return place

    def sm_ops(self, gap, ph):
        ops = []
        s_par = ph % 2
        def elem(idx):
            if 0 <= idx < 16: return (1, idx, s_par, 'b0')
            if 16 <= idx < 32: return (0, idx - 16, s_par ^ 1, 'a1')
            if 32 <= idx < 48: return (1, idx - 32, s_par ^ 1, 'b1')
            return None
        x, e, par, tag = elem(gap + 1); ops.append((tag, opA(x, e, par)))
        if gap % 2 == 0:
            x, e, par, tag = elem(gap); ops.append((tag, opC(x, e // 2)))
        x, e, par, tag = elem(gap + 3); ops.append((tag, opF(x, e)))
        x, e, par, tag = elem(gap + 2); ops.append((tag, opE(x, e)))
        return ops

    def sm_stream(self, gaps, ph, tags):
        out = []
        for gp in gaps:
            ops = [t for tag, t in self.sm_ops(gp, ph) if tag in tags]
            ex = [t for t in ops if t.startswith('v_exp')]
            ot = [t for t in ops if not t.startswith('v_exp')]
            if ex and ot: out += ex + ot
            elif ex: out += ex + ["s_nop 0"]
            else: out += (["s_nop 0"] if ot else []) + ot
        return out

    def step(self, shape, ph):
        g = G[shape]
        b = Block(f"loop_{shape}_{ph}")
        b.e(f"L_loop_{shape}_{ph}:")
        place = self.plan_mem(g)
        free = {i: [] for i in range(32)}
        seq = []
        for gp in range(32):
            for it in place[gp]:
                if it[0] in ('K', 'V'): seq.append((gp, it))
        def count_after(need_items, wait_gap):
            lin = [(gp - 32, it) for gp, it in seq] + [(gp, it) for gp, it in seq]
            lin = [(t, it) for t, it in lin if t < wait_gap]
            last = max(max(i for i, (t, it) in enumerate(lin) if it == n) for n in need_items)
            return len(lin) - 1 - last
        wk = count_after([('K', s) for s in range(8)], 31)
        free[31].append(f"s_waitcnt lgkmcnt({wk})")
        wv0 = count_after([('V', j, e) for j in range(4) for e in range(2)], 7)
        free[7].append(f"s_waitcnt lgkmcnt({wv0})")
        wv1 = count_after([('V', j, e) for j in range(4, 8) for e in range(2)], 11)
        free[11].append(f"s_waitcnt lgkmcnt({wv1})")
        assert max(wk, wv0, wv1) <= 15
        if not X_NOVM: free[15].append(f"s_waitcnt vmcnt({4*g+2})")
        if not X_NOBAR: free[16].append("s_barrier")
        free[20].append(Q_PRE[0]); free[22].append(Q_PRE[1]); free[24].append(Q_PRE[2])
        free[28].append(Q_POST[0]); free[29].append(Q_POST[1])
        free[5].append(Q_POST[2]); free[6].append(Q_POST[3]); free[8].append(Q_POST[4]); free[9].append(Q_POST[5]); free[19].append(Q_POST[6])
        free[0].append(f"s_cmp_gt_i32 s{S_REM}, 0")
        free[1].append(f"s_cselect_b32 s{S_VUSE}, s{S_VOFF}, s{S_OOB}")
        free[2].append(f"s_cselect_b32 m0, s{S_M0V + (ph+3)%4}, s{S_TRASH}")
        free[3].append(f"s_sub_u32 s{S_KT}, s{S_VOFF}, 0x10000")
        free[4].append(f"s_sub_u32 s{S_VOFF}, s{S_VOFF}, 0x8000")
        free[10].append(f"s_cmp_gt_i32 s{S_REM}, 2")
        free[12].append(f"s_cselect_b32 s{S_KUSE}, s{S_KT}, s{S_OOB}")
        free[14].append(f"s_cselect_b32 m0, s{S_M0K + (ph+5)%4}, s{S_TRASH}")
        free[18].append(f"s_sub_u32 s{S_REM}, s{S_REM}, 1")
        free[30].append(f"s_cmp_ge_i32 s{S_REM}, -1")
        for gp in range(32):
            if gp < 8: b.e(mfma_q(0, gp, "0"))
            elif gp < 16: b.e(mfma_v(0, gp - 8))
            elif gp < 24: b.e(mfma_q(1, gp - 16, "0"))
            else: b.e(mfma_v(1, gp - 24))
            for t in free[gp]: b.e(t)
            for it in place[gp]:
                if X_NODMA and it[0] in ('KD', 'VD', 'QD'): continue
                if X_NOLDS and it[0] in ('K', 'V'): continue
                if it[0] == 'K': b.e(kread(it[1], (ph + 2) % 4 if gp >= 16 else (ph + 1) % 4))
                elif it[0] == 'V': b.e(vread(it[1], it[2], (ph + 1) % 4 if gp >= 16 else ph % 4))
                elif it[0] == 'KD': b.e(dma_k(shape, it[1]))
                elif it[0] == 'VD': b.e(dma_v(shape, it[1]))
                elif it[0] == 'QD': b.e(dma_q(ph))
            ops = self.sm_ops(gp, ph)
            if gp == 15:
                b.e(f"v_cmp_nge_f32 vcc, s{S_THR}, v{L+2*1+ph%2}")
            if gp == 31:
                b.e(f"v_cmp_nge_f32 vcc, s{S_THR}, v{L+2*0+(ph+1)%2}")
            for tag, t in ops: b.e(t)
            if gp == 15: self.check_site(b, 1, ph % 2)
            if gp == 31: self.check_site(b, 0, (ph + 1) % 2)
        b.e(f"s_cbranch_scc0 L_tail_{shape}_{(ph+1)%4}")
        if ph == 3: b.e(f"s_branch L_loop_{shape}_0")
        return b

    def dma_v_part(self, b, ph, shape):
        for t in Q_POST[2:]: b.e(t)
        b.e(f"""s_cmp_gt_i32 s{S_REM}, 0
                s_cselect_b32 s{S_VUSE}, s{S_VOFF}, s{S_OOB}
                s_cselect_b32 m0, s{S_M0V + (ph+3)%4}, s{S_TRASH}
                s_sub_u32 s{S_KT}, s{S_VOFF}, 0x10000
                s_sub_u32 s{S_VOFF}, s{S_VOFF}, 0x8000""")
        for i in range(G[shape]): b.e(dma_v(shape, i))
    def dma_k_part(self, ph, shape):
        return [f"s_cmp_gt_i32 s{S_REM}, 2",
                f"s_cselect_b32 s{S_KUSE}, s{S_KT}, s{S_OOB}",
                f"s_cselect_b32 m0, s{S_M0K + (ph+5)%4}, s{S_TRASH}",
                f"s_sub_u32 s{S_REM}, s{S_REM}, 1"] + [dma_k(shape, i) for i in range(G[shape])]
    def dma_q_part(self, dummy=False):
        if dummy:
            return [f"s_mov_b32 m0, s{S_TRASH}", f"s_mov_b32 s{S_QUSE}, s{S_OOB}", f"s_add_u32 s{S_QCNT}, s{S_QCNT}, 1", dma_q()]
        return Q_PRE + [Q_POST[0], dma_q(0), Q_POST[1]]

    def warm(self):
        N = S_N
        k = self.uid()
        o = [f"s_bitcmp1_b32 s{N+3}, 11", f"s_cbranch_scc0 L_wm{k}",
             f"s_cmp_eq_u32 s{S_HP}, 0", f"s_cbranch_scc0 L_wv{k}"]
        for u in range(4):
            o += [f"s_sub_u32 s{S_T0}, s{N+1}, {u*0x8000}", f"s_cmp_gt_i32 s{N+2}, {u}", f"s_cselect_b32 s{S_T0}, s{S_T0}, s{S_OOB}",
                  f"buffer_load_dword v{V_DUMMY}, v{V_WARM}, {sr(SRD_K,4)}, s{S_T0} offen"]
        o += [f"s_branch L_wm{k}", f"L_wv{k}:"]
        for u in range(3):
            o += [f"s_sub_u32 s{S_T0}, s{N+1}, {u*0x8000}", f"s_cmp_gt_i32 s{N+2}, {u}", f"s_cselect_b32 s{S_T0}, s{S_T0}, s{S_OOB}",
                  f"buffer_load_dword v{V_DUMMY}, v{V_WARM}, {sr(SRD_V,4)}, s{S_T0} offen"]
        o += [f"L_wm{k}:"]
        return o

    def pf_group(self, kind, u, N=S_N):
        k = self.uid()
        m0r = (S_M0K if kind == 'K' else S_M0V) + u
        d = dma_k if kind == 'K' else dma_v
        T = S_T0 + 4
        return [f"s_sub_u32 s{T}, s{N+1}, {u*0x8000}",
                f"s_cmp_gt_i32 s{N+2}, {u}",
                f"s_cselect_b32 s{T}, s{T}, s{S_OOB}",
                f"s_cselect_b32 m0, s{m0r}, s{S_TRASH}",
                f"s_bitcmp1_b32 s{N+3}, 10",
                f"s_cbranch_scc1 L_pfb{k}",
                d('A', 0, T), d('A', 1, T),
                f"s_branch L_pfe{k}",
                f"L_pfb{k}:",
                d('B', 0, T), d('B', 1, T), d('B', 2, T), d('B', 3, T),
                f"L_pfe{k}:"]

    def hookB(self, b, clear, wait_first, wait_norm):
        k = self.uid()
        b.e(f"""s_cmp_eq_u32 s{S_FIRST}, 0
                s_cbranch_scc1 L_hb{k}""")
        for kind, u in (('K', 2), ('V', 1), ('K', 3)):
            for t in self.pf_group(kind, u, S_J): b.e(t)
        b.e(f"""s_mov_b32 m0, s{S_TRASH}
                s_mov_b32 s{S_QUSE}, s{S_OOB}""")
        for _ in range(5): b.e(dma_q())
        if clear: b.e(f"s_mov_b32 s{S_FIRST}, 0")
        b.e(f"s_waitcnt vmcnt({wait_first})")
        b.e(f"s_branch L_hc{k}")
        b.e(f"L_hb{k}:")
        b.e(f"s_waitcnt vmcnt({wait_norm})")
        b.e(f"L_hc{k}:")

    def idle_step(self, shape):
        g = G[shape]
        ph = 3
        b = Block(f"idle_{shape}")
        b.e(f"L_idle_{shape}:")
        self.dma_v_part(b, ph, shape)
        self.hookB(b, shape == 'B', (16 if shape == 'A' else 0) + g + 3*g + 5, 4*g)
        b.e("s_barrier")
        for t in self.dma_k_part(ph, shape): b.e(t)
        for t in self.dma_q_part(True): b.e(t)
        return b

    def qreads(self, b, x):
        for s in range(8):
            b.e(f"ds_read_b128 {ar(AQ+32*x+4*s,4)}, v{P+8*x+s}")

    def maxtree(self, x):
        s0 = S + 16*x; t = 2 + 2*x
        o = [f"v_max3_f32 v{t}, v{s0}, v{s0+1}, v{s0+2}",
             f"v_max3_f32 v{t+1}, v{s0+3}, v{s0+4}, v{s0+5}"]
        for i in range(6, 14, 4):
            o += [f"v_max3_f32 v{t}, v{t}, v{s0+i}, v{s0+i+1}", f"v_max3_f32 v{t+1}, v{t+1}, v{s0+i+2}, v{s0+i+3}"]
        o += [f"v_max3_f32 v{t}, v{t}, v{s0+14}, v{s0+15}",
              f"v_max_f32 v{t}, v{t}, v{t+1}",
              f"v_mov_b32 v{t+1}, v{t}",
              "s_nop 1",
              f"v_permlane32_swap_b32 v{t}, v{t+1}",
              f"v_max_f32 v{t}, v{t}, v{t+1}",
              f"v_mul_f32 v{MC+x}, s{S_C}, v{t}"]
        return o

    def head(self, shape, f):
        g = G[shape]
        ph = (f - 1) % 4
        b = Block(f"head_{shape}_{f}")
        b.e(f"L_head_{shape}_{f}:")
        if shape == 'A' and f == 1:
            b.e(f"""s_cmp_eq_u32 s{S_FIRST}, 0
                    s_cbranch_scc1 L_hq1_skip
                    s_mov_b32 s{S_FIRST}, 0
                    s_waitcnt vmcnt({g + 3*g + 5 + g + 1})""")
            self.qreads(b, 0); self.qreads(b, 1)
            b.e("L_hq1_skip:")
        for s in range(8): b.e(kread(s, f % 4))
        b.e(mfma_z(0))
        self.dma_v_part(b, ph, shape)
        b.e(mfma_z(1))
        b.e(f"v_mov_b32 v{L+0+((f-1)%2)}, 0")
        b.e(f"v_mov_b32 v{L+2+((f-1)%2)}, 0")
        b.e(mfma_z(2))
        b.e("s_waitcnt lgkmcnt(0)")
        for s in range(8): b.e(mfma_q(0, s, vr(MJ, 16)))
        if shape == 'A' and f == 0:
            b.e(f"""s_cmp_eq_u32 s{S_FIRST}, 0
                    s_cbranch_scc1 L_hq_skip
                    s_waitcnt vmcnt({3*g})""")
            self.qreads(b, 1)
            b.e("s_waitcnt lgkmcnt(0)")
            b.e("L_hq_skip:")
        sma = self.sm_stream(range(13, 29), ph, ('a1',))
        rest = self.sm_stream(range(29, 32), ph, ('a1', 'b1'))
        valu = ["s_nop 5", "s_nop 4"] + self.maxtree(0) + sma
        qb = [mfma_q(1, s, vr(MJ, 16)) for s in range(8)]
        tmp = Block()
        vv = list(valu)
        for m in qb:
            tmp.e(m); used = 0
            while vv and used + cost(vv[0]) <= 6:
                t = vv.pop(0); tmp.e(t); used += cost(t)
        b.ext(tmp)
        if f == 0: self.hookB(b, True, g + 3*g + 5, 4*g)
        else: b.e(f"s_waitcnt vmcnt({4*g+1})")
        b.e("s_barrier")
        mem = [[kread(s, (f + 1) % 4)] for s in range(8)] + [self.dma_k_part(ph, shape)] + [self.dma_q_part(f == 0)]
        mem += [[vread(j, 0, f % 4), vread(j, 1, f % 4)] for j in range(8)]
        n1 = 12
        valu2 = vv[:n1] + self.maxtree(1) + vv[n1:] + rest
        weave(b, [mfma_z(i) for i in range(3, 8)], mem, valu2, budget=7, mem_per_gap=4)
        if WARM:
            for t in self.warm(): b.e(t)
        b.e("s_waitcnt lgkmcnt(0)")
        stamp(b)
        b.e(f"s_cmp_ge_i32 s{S_REM}, -1")
        b.e(f"s_cbranch_scc0 L_tail_{shape}_{f%4}")
        b.e(f"s_branch L_loop_{shape}_{f%4}")
        return b

    def pfsetup(self):
        N = S_N
        o = [f"s_lshl_b32 s{S_T0}, s{S_PAIR}, 16",
             f"s_bitcmp1_b32 s{N+3}, 10",
             f"s_cselect_b32 s{S_RING}, s{S_T0}, 0",
             f"s_cselect_b32 s{S_T0}, s{S_MBB}, s{S_MBA}"]
        for i in range(4):
            o.append(f"s_add_u32 s{S_M0K+i}, s{S_T0}, {i*8192}")
            o.append(f"s_add_u32 s{S_M0V+i}, s{S_T0}, {32768+i*8192}")
        return o

    def tail(self, shape, ph):
        g = G[shape]
        b = Block(f"tail_{shape}_{ph}")
        b.e(f"L_tail_{shape}_{ph}:")
        stamp(b)
        place = self.plan_mem(g)
        for gp in range(16):
            for it in place[gp]:
                if it[0] == 'V': b.e(vread(it[1], it[2], ph % 4))
        k = self.uid()
        b.e(f"""s_lshl_b32 s{S_T0}, s{S_Q2}, 4
                s_max_i32 s{S_T0}, s{S_T0}, s{S_QCNT}
                s_cmp_gt_i32 s{S_T0}, 1
                s_cbranch_scc0 L_nq{k}
                s_call_b64 {sr(S_RET,2)}, L_qrem_{ph}
                L_nq{k}:""")
        smb = self.sm_stream(range(0, 15), ph, ('b0',))
        for t in smb[:10]: b.e(t)
        b.e("s_waitcnt lgkmcnt(0)")
        pfs = self.pfsetup()
        weave(b, [mfma_v(0, j) for j in range(8)],
              [["s_barrier"] + pfs[:4], pfs[4:8], pfs[8:], self.pf_group('K', 0), [], [], self.pf_group('K', 1)], smb[10:], budget=8, mem_per_gap=1)
        b.e(f"v_cmp_nge_f32 vcc, s{S_THR}, v{L+2*1+ph%2}")
        b.e("s_nop 1")
        self.check_site(b, 1, ph % 2)
        ec = [f"v_mov_b32 v2, v{L+0+ph%2}", f"v_mov_b32 v3, v{L+0+ph%2}", f"v_mov_b32 v4, v{L+2+ph%2}", f"v_mov_b32 v5, v{L+2+ph%2}"] + self.epi_common(shape)
        weave(b, [mfma_v(1, j) for j in range(8)], [], ec, budget=6)
        b.e(f"s_branch L_epi_{shape}")
        return b

    def store_chunks(self, b, subs, scale_ops, extra):
        extra = list(extra)
        chunks = [(x, dh) for x in subs for dh in range(2)]
        R = S + 16
        WA = P + 8
        def reads(ci):
            o = []
            for kk in range(4):
                off = (ci % 2) * 4096 + kk * 1024
                if kk % 2 == 0: o.append(f"ds_read_b128 {vr(R+4*kk,4)}, v{STR} offset:{off}")
                else: o.append(f"ds_read2st64_b64 {vr(R+4*kk,4)}, v{E0} offset0:{off//512} offset1:{off//512}")
            return o
        def stores(ci):
            x, dh = chunks[ci]
            return [f"buffer_store_dwordx4 {vr(R+4*kk,4)}, v{OV+kk}, {sr(SRD_O,4)}, s{S_QOFF} offen offset:{x*256 + dh*128}{NT_O}" for kk in range(4)]
        nch = len(chunks)
        for ci in range(nch + 2):
            st = stores(ci - 2) if ci >= 2 else []
            if st: b.e(f"s_waitcnt lgkmcnt({8 if ci - 1 < nch else 0})")
            if ci < nch:
                x, dh = chunks[ci]
                n = 0
                for dbl in range(2):
                    db = 2*dh + dbl
                    for gq in range(4):
                        tb = P + 4 * (n % 2); X = S + 2 * n
                        for q in range(0, 4, 2):
                            for t in scale_ops(x, 16*db + 4*gq + q, tb + q): b.e(t)
                        b.e(f"v_cvt_pk_bf16_f32 v{X}, v{tb}, v{tb+1}")
                        b.e(f"v_cvt_pk_bf16_f32 v{X+1}, v{tb+2}, v{tb+3}")
                        if st and n % 2 == 0: b.e(st.pop(0))
                        elif extra and n % 4 == 1:
                            for t in extra.pop(0): b.e(t)
                        n += 1
            else:
                while extra:
                    for t in extra.pop(0): b.e(t)
            for t in st: b.e(t)
            if 1 <= ci <= nch:
                for kk in range(4):
                    off = ((ci - 1) % 2) * 4096 + kk * 1024
                    if kk % 2 == 0: b.e(f"ds_read_b128 {vr(R+4*kk,4)}, v{STR} offset:{off}")
                    else:
                        b.e(f"ds_read_b64 {vr(R+4*kk,2)}, v{STR} offset:{off+8}")
                        b.e(f"ds_read_b64 {vr(R+4*kk+2,2)}, v{STR} offset:{off}")
            if ci < nch:
                for n in range(8):
                    b.e(f"ds_write_b64 v{WA+n}, {vr(S+2*n,2)} offset:{(ci%2)*4096}")

    def epi_common(self, shape):
        J = S_J
        o = f"""s_and_b32 s{S_T0}, s{J+3}, 63
                v_and_b32 v6, 31, v{V_LANE}
                v_lshrrev_b32 v7, 5, v{V_LANE}
                v_lshlrev_b32 v{STW}, 7, v6
                v_bfe_u32 v{E0}, v{V_LANE}, 3, 1
                v_xor_b32 v7, v7, v{E0}
                v_lshl_add_u32 v{STW}, v7, 3, v{STW}
                v_and_b32 v6, 7, v{V_LANE}
                v_lshl_add_u32 v{STW}, v6, 4, v{STW}
                v_add_u32 v{STW}, s{S_STG}, v{STW}
                v_permlane32_swap_b32 v2, v3
                v_permlane32_swap_b32 v4, v5
                v_lshrrev_b32 v6, 3, v{V_LANE}
                v_and_b32 v7, 7, v{V_LANE}
                v_add_f32 v2, v2, v3
                v_add_f32 v4, v4, v5
                v_xor_b32 v{STR}, v6, v7
                v_lshlrev_b32 v{STR}, 4, v{STR}
                v_lshl_add_u32 v{STR}, v6, 7, v{STR}
                v_add_u32 v{STR}, s{S_STG}, v{STR}
                v_lshlrev_b32 v7, 4, v7
                v_lshl_add_u32 v7, v6, 12, v7
                v_mov_b32 v{E1}, s{S_OOB}""".split('\n')
        o = [t.strip() for t in o]
        for kk in range(4):
            o += [f"v_add_u32 v{E0}, {8*kk}, v6",
                  f"v_cmp_gt_u32 vcc, s{S_T0}, v{E0}",
                  f"v_add_u32 v{E0}, {kk*32768}, v7",
                  "s_nop 0",
                  f"v_cndmask_b32 v{OV+kk}, v{E1}, v{E0}, vcc"]
        if shape == 'A':
            o += ["v_rcp_f32 v2, v2", "v_rcp_f32 v4, v4"]
        else:
            o += [f"s_lshl_b32 s{S_T0}, s{S_PAIR}, 16",
                  f"s_lshl_b32 s{S_T0+1}, s{S_HP}, 14",
                  f"s_add_u32 s{S_T0}, s{S_T0}, s{S_T0+1}",
                  f"s_add_u32 s{S_T0}, s{S_T0}, 0x8000",
                  f"s_xor_b32 s{S_T0+1}, s{S_T0}, 0x10000",
                  f"v_lshlrev_b32 v6, 4, v{V_LANE}",
                  f"v_add_u32 v{XW}, s{S_T0}, v6",
                  f"v_add_u32 v{XR}, s{S_T0+1}, v6",
                  f"s_lshl_b32 s{S_T0}, s{S_W}, 9",
                  f"s_add_u32 s{S_T0}, s{S_T0}, 0x6000",
                  f"s_xor_b32 s{S_T0+1}, s{S_T0}, 0x400",
                  f"v_lshlrev_b32 v6, 3, v{V_LANE}",
                  f"v_add_u32 v{XM}, s{S_T0}, v6",
                  f"v_add_u32 v{XN}, s{S_T0+1}, v6"]
        return o

    def epilogue(self, shape):
        b = Block(f"epi_{shape}")
        b.e(f"L_epi_{shape}:")
        stamp(b)
        for n in range(8): b.e(f"v_xor_b32 v{P+8+n}, {n*16}, v{STW}")
        def ex(): return [self.pf_group('V', 0), self.pf_group('K', 2), self.pf_group('V', 1), self.pf_group('K', 3)]
        if shape == 'A':
            b.e("s_nop 0")
            self.store_chunks(b, (0, 1), lambda x, i, d: [f"v_pk_mul_f32 {vr(d,2)}, {vr(O+64*x+i,2)}, {vr(2+2*x,2)} op_sel_hi:[1,0]"], ex())
            b.e(f"s_mov_b32 s{S_WSEL}, 0")
            b.e("s_branch L_job")
        else:
            b.e(f"""s_cmp_eq_u32 s{S_PAIR}, 0
                    s_cbranch_scc0 L_epiB_1""")
            for own in range(2):
                oth = own ^ 1
                if own == 1: b.e("L_epiB_1:")
                b.e(f"v_mov_b32 v6, v{MC+oth}")
                b.e(f"v_mov_b32 v7, v{2+2*oth}")
                b.e("s_nop 7")
                b.e(f"ds_write_b64 v{XM}, v[6:7]")
                for i in range(16):
                    b.e(f"ds_write_b128 v{XW}, {vr(O+64*oth+4*i,4)} offset:{i*1024}")
                b.e("s_waitcnt lgkmcnt(0)")
                b.e("s_barrier")
                b.e(f"ds_read_b64 v[6:7], v{XN}")
                for i in range(16):
                    b.e(f"ds_read_b128 {vr(O+64*oth+4*i,4)}, v{XR} offset:{i*1024}")
                lo = 2 + 2*own
                b.e(f"""s_waitcnt lgkmcnt(15)
                        s_nop 0
                        s_waitcnt lgkmcnt(15)
                        v_max_f32 v{FO}, v{MC+own}, v6
                        v_sub_f32 v{FT}, v6, v{FO}
                        v_sub_f32 v{FO}, v{MC+own}, v{FO}
                        v_exp_f32 v{FT}, v{FT}
                        v_exp_f32 v{FO}, v{FO}
                        s_nop 0
                        v_mul_f32 v7, v7, v{FT}
                        v_fma_f32 v7, v{lo}, v{FO}, v7
                        v_rcp_f32 v7, v7
                        s_nop 0
                        v_mul_f32 v{FO}, v{FO}, v7
                        v_mul_f32 v{FT}, v{FT}, v7
                        s_waitcnt lgkmcnt(0)
                        s_barrier""")
                self.store_chunks(b, (own,), lambda x, i, d, own=own, oth=oth: [
                    f"v_pk_mul_f32 {vr(d,2)}, {vr(O+64*own+i,2)}, {vr(FO,2)} op_sel_hi:[1,0]",
                    f"v_pk_fma_f32 {vr(d,2)}, {vr(O+64*oth+i,2)}, {vr(FT,2)}, {vr(d,2)} op_sel_hi:[1,0,1]"], ex())
                b.e(f"s_mov_b32 s{S_WSEL}, 1")
                b.e("s_branch L_job")
        return b

    def rare(self, x, par):
        b = Block(f"rare_{x}_{par}")
        b.e(f"L_rare_{x}_{par}:")
        s0 = S + 16*x
        b.e("s_nop 15")
        b.e(f"v_max3_f32 v2, v{s0}, v{s0+1}, v{s0+2}")
        for i in range(3, 15, 2):
            b.e(f"v_max3_f32 v2, v2, v{s0+i}, v{s0+i+1}")
        b.e(f"v_max_f32 v2, v2, v{s0+15}")
        b.e("v_mov_b32 v3, v2")
        b.e("s_nop 1")
        b.e("v_permlane32_swap_b32 v2, v3")
        b.e("v_max_f32 v2, v2, v3")
        b.e(f"v_mul_f32 v2, s{S_C}, v2")
        b.e(f"v_max_f32 v2, v2, v{MC+x}")
        b.e(f"v_sub_f32 v3, v{MC+x}, v2")
        b.e("v_exp_f32 v3, v3")
        b.e(f"v_mov_b32 v{MC+x}, v2")
        b.e(f"v_mul_f32 v{L+2*x+par}, v3, v{L+2*x+(par^1)}")
        for i in range(64):
            b.e(f"v_mul_f32 v{O+64*x+i}, v3, v{O+64*x+i}")
        for k in range(8):
            b.e(f"v_fma_f32 v4, v{s0+2*k}, s{S_C}, -v{MC+x}")
            b.e(f"v_fma_f32 v5, v{s0+2*k+1}, s{S_C}, -v{MC+x}")
            b.e("v_exp_f32 v4, v4")
            b.e("v_exp_f32 v5, v5")
            b.e("s_nop 0")
            b.e(f"v_add_f32 v{L+2*x+par}, v{L+2*x+par}, v4")
            b.e(f"v_add_f32 v{L+2*x+par}, v{L+2*x+par}, v5")
            b.e(f"v_cvt_pk_bf16_f32 v{P+8*x+k}, v4, v5")
        b.e("s_nop 1")
        b.e(f"s_setpc_b64 {sr(S_RET,2)}")
        return b

    def prologue(self):
        b = Block("prologue")
        b.e(f"""s_cmp_ge_u32 s2, 256
                s_cbranch_scc1 L_end
                s_load_dwordx4 s[52:55], s[0:1], 0
                s_load_dwordx2 s[56:57], s[0:1], 16
                s_load_dwordx2 s[58:59], s[0:1], 32
                s_getpc_b64 {sr(S_TAB,2)}""")
        b.e("L_pc:")
        b.e(f"""s_add_u32 s{S_TAB}, s{S_TAB}, jobtab-L_pc
                s_addc_u32 s{S_TAB+1}, s{S_TAB+1}, 0
                v_lshrrev_b32 v1, 6, v0
                v_and_b32 v{V_LANE}, 63, v0
                v_readfirstlane_b32 s{S_W}, v1
                v_lshlrev_b32 v2, 7, v0
                s_getpc_b64 s[34:35]
                {'global_load_dword v13, v2, s[34:35]' if CODEWARM else 's_nop 0'}
                v_add_u32 v2, 0x8000, v2
                {'global_load_dword v13, v2, s[34:35]' if CODEWARM else 's_nop 0'}
                s_lshr_b32 s{S_PAIR}, s{S_W}, 1
                s_and_b32 s{S_HP}, s{S_W}, 1
                s_lshl_b32 s3, s2, 7
                s_lshl_b32 s4, s{S_PAIR}, 6
                s_add_u32 s3, s3, s4
                s_add_u32 s{S_TAB}, s{S_TAB}, s3
                s_addc_u32 s{S_TAB+1}, s{S_TAB+1}, 0
                s_load_dwordx4 {sr(S_N,4)}, {sr(S_TAB,2)}, 0
                s_load_dwordx8 {sr(S_JT,8)}, {sr(S_TAB,2)}, 16
                s_mov_b32 s{S_C}, {C_SCALE:#x}
                s_mov_b32 s{S_THR}, {THR:#x}
                s_mov_b32 s{S_OOB}, 0x80000000
                s_mov_b32 s{S_TRASH}, 0x3c000
                s_lshl_b32 s{S_STG}, s{S_PAIR}, 16
                s_lshl_b32 s3, s{S_HP}, 13
                s_add_u32 s{S_STG}, s{S_STG}, s3
                s_add_u32 s{S_STG}, s{S_STG}, 0xc000
                s_lshl_b32 s{S_MBA}, s{S_W}, 11
                s_lshl_b32 s{S_MBB}, s{S_PAIR}, 16
                s_lshl_b32 s3, s{S_HP}, 12
                s_add_u32 s{S_MBB}, s{S_MBB}, s3""")
        b.e(f"""v_lshrrev_b32 v5, 4, v{V_LANE}
                v_and_b32 v6, 15, v{V_LANE}
                v_xor_b32 v7, v6, v5
                v_lshlrev_b32 v7, 4, v7
                v_lshl_add_u32 v2, v5, 10, v7
                v_lshl_add_u32 v{DQ}, v5, 12, v7
                v_xor_b32 v{DQ+1}, 64, v{DQ}
                v_xor_b32 v{DQ+2}, 0x80, v{DQ}
                v_xor_b32 v{DQ+3}, 0xc0, v{DQ}
                v_lshrrev_b32 v4, 1, v{V_LANE}
                v_and_b32 v{V_WARM}, 1, v{V_LANE}
                v_lshlrev_b32 v{V_WARM}, 7, v{V_WARM}
                v_lshl_add_u32 v{V_WARM}, v4, 10, v{V_WARM}
                v_lshlrev_b32 v7, 2, v5
                v_xor_b32 v7, v6, v7
                v_lshlrev_b32 v7, 4, v7
                v_lshl_add_u32 v3, v5, 10, v7""")
        for sh in 'AB':
            b.e(f"s_lshl_b32 s5, s{S_W}, 1" if sh == 'A' else f"s_lshl_b32 s5, s{S_HP}, 2")
            for i in range(G[sh]):
                b.e(f"""s_add_u32 s3, s5, {i}
                        s_and_b32 s4, s3, 3
                        s_lshl_b32 s4, s4, 6
                        s_lshl_b32 s3, s3, 12
                        s_sub_u32 s3, s3, {i*1024}
                        v_xor_b32 v{DKR[sh][i]}, s4, v2
                        v_add_u32 v{DKR[sh][i]}, s3, v{DKR[sh][i]}
                        v_add_u32 v{DVR[sh][i]}, s3, v3""")
        b.e(f"""s_waitcnt lgkmcnt(0)
                s_mov_b32 s{SRD_Q}, s52
                s_mov_b32 s{SRD_Q+1}, s53
                s_mov_b32 s{SRD_Q+2}, {QBYTES}
                s_mov_b32 s{SRD_Q+3}, 0x00020000
                s_mov_b32 s{SRD_K}, s54
                s_mov_b32 s{SRD_K+1}, s55
                s_mov_b32 s{SRD_K+2}, {KBYTES}
                s_mov_b32 s{SRD_K+3}, 0x00020000
                s_mov_b32 s{SRD_V}, s56
                s_mov_b32 s{SRD_V+1}, s57
                s_mov_b32 s{SRD_V+2}, {KBYTES}
                s_mov_b32 s{SRD_V+3}, 0x00020000
                s_mov_b32 s{SRD_O}, s58
                s_mov_b32 s{SRD_O+1}, s59
                s_mov_b32 s{SRD_O+2}, {QBYTES}
                s_mov_b32 s{SRD_O+3}, 0x00020000""")
        if STAMPS:
            b.e(f"""s_load_dwordx2 s[84:85], s[0:1], 48
                    s_waitcnt lgkmcnt(0)
                    s_mov_b32 s86, 0x1000000
                    s_mov_b32 s87, 0x00020000
                    s_lshl_b32 s82, s2, 2
                    s_add_u32 s82, s82, s{S_W}
                    s_lshl_b32 s82, s82, 8""")
            stamp(b, True)
            stamp(b)
        if DBG:
            b.e(f"""s_load_dwordx2 s[84:85], s[0:1], 40
                    s_memrealtime s[80:81]
                    s_memtime s[82:83]
                    s_waitcnt lgkmcnt(0)
                    s_mov_b32 s86, 256
                    s_mov_b32 s87, 0x00020000
                    s_not_b32 s83, s80""")
        b.e(f"""s_mov_b32 s{S_J+3}, 0
                s_mov_b32 s{S_FIRST}, 1""")
        for t in self.pfsetup(): b.e(t)
        for t in self.pf_group('K', 0): b.e(t)
        self.qstate(b)
        b.e(f"""s_and_b32 s{S_T0}, s{S_N+3}, 0x600
                s_cmp_eq_u32 s{S_T0}, 0x200
                s_cbranch_scc1 L_noq""")
        b.e(f"s_call_b64 {sr(S_RET,2)}, L_qrem_0")
        b.e("L_noq:")
        for i in range(4): b.e(f"v_accvgpr_write_b32 a{AZ+i}, 0")
        b.e(f"""v_mov_b32 v{V_M16}, 0xffff
                v_and_b32 v6, 31, v{V_LANE}
                v_lshrrev_b32 v2, 5, v{V_LANE}
                v_lshlrev_b32 v3, 2, v2
                v_sub_u32 v3, v3, v6
                v_mov_b32 v4, {NEGBIG:#x}""")
        for r in range(16):
            kk = 8*(r//4) + r % 4
            b.e(f"v_cmp_lt_i32 vcc, {-kk}, v3")
            b.e("s_nop 1")
            b.e(f"v_cndmask_b32 v{MASK+r}, 0, v4, vcc")
        b.e("""v_and_b32 v5, 15, v6
               v_xor_b32 v5, v5, v2
               v_lshlrev_b32 v5, 4, v5
               v_lshl_add_u32 v5, v6, 8, v5""")
        for s in range(8):
            b.e(f"v_xor_b32 v{KADDR+s}, {32*s}, v5")
        b.e(f"""v_bfe_u32 v5, v{V_LANE}, 2, 2
                v_lshl_add_u32 v6, v2, 2, v5
                v_lshlrev_b32 v6, 8, v6
                v_lshl_add_u32 v6, v5, 6, v6
                v_bfe_u32 v7, v{V_LANE}, 4, 1
                v_lshl_add_u32 v6, v7, 5, v6
                v_and_b32 v7, 3, v{V_LANE}
                v_lshl_add_u32 v6, v7, 3, v6""")
        for db in range(4):
            b.e(f"v_xor_b32 v{VADDR+db}, {64*db}, v6")
        b.e(f"""s_and_b32 s{S_T0}, s{S_N+3}, 0x600
                s_cmp_eq_u32 s{S_T0}, 0
                s_cselect_b32 s{S_WSEL}, 2, 3""")
        return b

    def qstate(self, b):
        N = S_N
        b.e(f"""s_lshl_b32 s{S_T0}, s{S_HP}, 9
                s_add_u32 s{S_QSO}, s{N}, s{S_T0}
                s_lshl_b32 s{S_T0}, s{S_PAIR}, 8
                s_add_u32 s{S_T0+1}, s{S_QSO}, s{S_T0}
                s_lshl_b32 s{S_T0}, s{S_W}, 13
                s_add_u32 s{S_T0+2}, s{S_T0}, 0x20000
                s_add_u32 s{S_QM02}, s{S_T0}, 0x10000
                s_lshl_b32 s{S_T0}, s{S_HP}, 14
                s_add_u32 s{S_T0+5}, s{S_T0}, 0x20000
                s_add_u32 s{S_T0+6}, s{S_T0}, 0x22000
                s_lshl_b32 s{S_T0}, s{S_PAIR}, 13
                s_add_u32 s{S_T0+7}, s{S_T0+5}, s{S_T0}
                s_add_u32 s{S_QSO2}, s{S_QSO}, 256
                s_bitcmp1_b32 s{N+3}, 10
                s_cselect_b32 s{S_QSO}, s{S_T0+1}, s{S_QSO}
                s_cselect_b32 s{S_QST}, s{S_T0+5}, s{S_T0+2}
                s_cselect_b32 s{S_QST2}, s{S_T0+6}, s{S_QM02}
                s_cselect_b32 s{S_QM0}, s{S_T0+7}, s{S_T0+2}
                s_cselect_b32 s{S_QMADJ}, s{S_T0+7}, s{S_QM02}
                s_cselect_b32 s{S_QCNT}, 9, 17
                s_cselect_b32 s{S_QADJV}, 0, {(256 - 131072) & 0xffffffff:#x}
                s_cselect_b32 s{S_Q2}, 0, 1
                s_lshr_b32 s{S_T0}, s{S_J+3}, 10
                s_and_b32 s{S_Q2}, s{S_Q2}, s{S_T0}
                s_cmp_eq_u32 s{S_Q2}, 1
                s_cselect_b32 s{S_QCNT}, 9, s{S_QCNT}
                s_cselect_b32 s{S_QADJV}, 0, s{S_QADJV}
                s_cselect_b32 s{S_QMADJ}, s{S_QM0}, s{S_QMADJ}
                s_bitcmp1_b32 s{N+3}, 11
                s_cselect_b32 s{S_QCNT}, s{S_QCNT}, 0
                s_cselect_b32 s{S_Q2}, s{S_Q2}, 0""")

    def qrem(self):
        b = Block("qrem")
        for i in range(4):
            b.e(f"L_qrem_{i}:")
            for t in Q_POST[2:]: b.e(t)
            b.e(f"""s_cmp_gt_i32 s{S_QCNT}, 0
                    s_cbranch_scc0 L_qrem_done
                    s_mov_b32 s{S_QUSE}, s{S_QSO}
                    s_mov_b32 m0, s{S_QM0}""")
            b.e(Q_POST[0])
            b.e(dma_q(i))
            b.e(Q_POST[1])
        b.e("s_branch L_qrem_0")
        b.e("L_qrem_done:")
        b.e(f"""s_cmp_eq_u32 s{S_Q2}, 0
                s_cbranch_scc1 L_qrem_ret
                s_mov_b32 s{S_Q2}, 0
                s_mov_b32 s{S_QSO}, s{S_QSO2}
                s_mov_b32 s{S_QM0}, s{S_QM02}
                s_mov_b32 s{S_QMADJ}, s{S_QM02}
                s_mov_b32 s{S_QCNT}, 9
                s_branch L_qrem_0
                L_qrem_ret:""")
        b.e(f"s_setpc_b64 {sr(S_RET,2)}")
        return b

    def jobstart(self):
        b = Block("jobstart")
        J = S_J
        b.e("L_job:")
        b.e(f"""s_bitcmp1_b32 s{S_N+3}, 11
                s_cbranch_scc0 L_end""")
        for i in range(8):
            b.e(f"v_and_or_b32 v{P+i}, v{KADDR+i}, v{V_M16}, s{S_QST}")
            b.e(f"v_and_or_b32 v{P+8+i}, v{KADDR+i}, v{V_M16}, s{S_QST2}")
        b.e(f"""s_mov_b64 {sr(J,2)}, {sr(S_N,2)}
                s_mov_b64 {sr(J+2,2)}, {sr(S_N+2,2)}
                s_mov_b64 {sr(S_N,2)}, {sr(S_JT,2)}
                s_mov_b64 {sr(S_N+2,2)}, {sr(S_JT+2,2)}
                s_mov_b64 {sr(S_JT,2)}, {sr(S_JT+4,2)}
                s_mov_b64 {sr(S_JT+2,2)}, {sr(S_JT+6,2)}
                s_mov_b64 {sr(S_JT+6,2)}, 0
                s_lshl_b32 s{S_T0}, s{S_HP}, 9
                s_add_u32 s{S_QOFF}, s{J}, s{S_T0}""")
        for i in range(8):
            b.e(f"v_and_or_b32 v{KADDR+i}, v{KADDR+i}, v{V_M16}, s{S_RING}")
        for i in range(4):
            b.e(f"v_and_or_b32 v{VADDR+i}, v{VADDR+i}, v{V_M16}, s{S_RING}")
        b.e(f"""s_bitcmp1_b32 s{J+3}, 8
                s_cselect_b32 s{S_T0}, -1, 0""")
        for r in range(16):
            b.e(f"v_and_b32 v{MJ+r}, s{S_T0}, v{MASK+r}")
        b.e(f"""s_sub_u32 s{S_REM}, s{J+2}, 2
                s_sub_u32 s{S_VOFF}, s{J+1}, 0x10000
                s_cmp_ge_u32 s{S_WSEL}, 2
                s_cbranch_scc1 L_js_first""")
        self.qstate(b)
        b.e(f"""s_cmp_eq_u32 s{S_WSEL}, 0
                s_cbranch_scc1 L_js_w0
                s_waitcnt vmcnt(18)
                L_js_w0:
                s_waitcnt vmcnt(26)
                s_barrier""")
        stamp(b)
        self.qreads(b, 0)
        self.qreads(b, 1)
        b.e("s_branch L_js_go")
        b.e("L_js_first:")
        b.e(f"""s_cmp_eq_u32 s{S_WSEL}, 2
                s_cbranch_scc1 L_js_w2
                s_waitcnt vmcnt(0)
                L_js_w2:
                s_waitcnt vmcnt(8)
                s_barrier""")
        stamp(b)
        self.qreads(b, 0)
        self.qreads(b, 1)
        for kind, u in (('K', 1), ('V', 0)):
            for t in self.pf_group(kind, u, S_J): b.e(t)
        b.e(f"s_call_b64 {sr(S_RET,2)}, L_qrem_0")
        self.qstate(b)
        b.e("L_js_go:")
        stamp(b)
        b.e(f"""s_bitcmp1_b32 s{J+3}, 10
                s_cbranch_scc1 L_pre_B""")
        return b

    def pre(self, shape):
        J = S_J
        b = Block(f"pre_{shape}")
        b.e(f"L_pre_{shape}:")
        b.e(f"s_bitcmp1_b32 s{J+3}, 9")
        b.e(f"s_cbranch_scc0 L_head_{shape}_0")
        return b

    def build(self, wg):
        pro = self.prologue()
        self.add(pro)
        self.add(self.jobstart())
        for shape in 'AB':
            self.add(self.pre(shape))
            self.add(self.idle_step(shape))
            self.add(self.head(shape, 1))
            self.add(self.head(shape, 0))
            al = Block(f"align_{shape}"); al.e(".p2align 6"); self.add(al)
            for ph in range(4): self.add(self.step(shape, ph))
            for ph in range(4): self.add(self.tail(shape, ph))
            self.add(self.epilogue(shape))
        self.add(self.qrem())
        for x in range(2):
            for par in range(2): self.add(self.rare(x, par))
        self.add(self.stubs)
        end = Block("end"); end.e("L_end:")
        if STAMPS:
            end.e("s_cmp_ge_u32 s2, 256"); end.e("s_cbranch_scc1 L_end2")
            stamp(end); end.e("s_waitcnt vmcnt(0)"); stamp(end); stamp(end, True)
            end.e("L_end2:")
        if DBG:
            end.e("s_cmp_ge_u32 s2, 256"); end.e("s_cbranch_scc1 L_end2")
            end.e("""s_waitcnt vmcnt(0)
                     s_memrealtime s[80:81]
                     s_memtime s[98:99]
                     s_waitcnt lgkmcnt(0)
                     s_sub_u32 s98, s98, s82
                     v_mov_b32 v6, s80
                     v_mov_b32 v7, 4
                     v_mov_b32 v5, s98
                     v_mov_b32 v4, 8
                     v_mov_b32 v3, s83
                     v_mov_b32 v2, 0
                     s_cmp_lg_u32 s27, 3
                     s_cbranch_scc1 L_end2
                     s_mov_b64 exec, 1
                     buffer_atomic_umax v6, v7, s[84:87], 0 offen
                     buffer_atomic_umax v5, v4, s[84:87], 0 offen
                     buffer_atomic_umax v3, v2, s[84:87], 0 offen""")
            end.e("L_end2:")
        end.e("s_endpgm"); self.add(end)
        B = self.blocks
        paths = []
        for sh in 'AB':
            lp = [f"loop_{sh}_{p}" for p in range(4)]
            paths.append(["prologue", "jobstart", f"pre_{sh}", f"head_{sh}_0"] + lp + lp)
            paths.append([f"pre_{sh}", f"idle_{sh}", f"head_{sh}_1"] + lp[1:] + lp)
            for ph in range(4):
                paths.append([lp[(ph-2) % 4], lp[(ph-1) % 4], f"tail_{sh}_{ph}", f"epi_{sh}", "jobstart"])
            paths.append([f"head_{sh}_0", f"tail_{sh}_0", f"epi_{sh}"])
            paths.append([f"head_{sh}_1", f"tail_{sh}_1", f"epi_{sh}"])
        paths.append(["qrem"])
        for x in range(2):
            for par in range(2): paths.append([f"rare_{x}_{par}", "loop_A_0"])
        nprob = 0
        for p in paths:
            for skip in (False, True):
                seq = sum((B[n].ins for n in p), [])
                if skip: seq = prune_forward_skips(seq)
                for pr in check_hazards(seq, "+".join(p)):
                    print("HAZARD", pr, file=sys.stderr); nprob += 1
        assert nprob == 0
        txt = ""
        for n in self.order: txt += B[n].text()
        return txt

def prune_forward_skips(seq):
    out = []; i = 0
    labels = {ins.text[:-1]: k for k, ins in enumerate(seq) if ins.kind == 'label' and ins.text.endswith(':')}
    while i < len(seq):
        ins = seq[i]; out.append(ins)
        if ins.op.startswith('s_cbranch_scc'):
            tgt = ins.ops[0]
            if tgt in labels and labels[tgt] > i and not tgt.startswith(('L_tail', 'L_loop', 'L_head', 'L_pre', 'L_end', 'L_epi')):
                i = labels[tgt]; continue
        i += 1
    return out

def table(wg):
    CU = sched.CU
    words = []
    for w in range(256):
        ent = [[], []]
        assert len(wg[w]) <= 3
        for (seq, kvh, kind, b, N) in wg[w]:
            s0, Ls = CU[seq], CU[seq+1] - CU[seq]
            def q(bb): return ((s0 + 32*bb) * 16 + kvh * 4) * 256
            def kv(t): return ((s0 + 32*t) * 4 + kvh) * 256
            def nv(bb): return max(0, min(32, Ls - 32*bb))
            if kind == 'A':
                ent[0] += [q(b), kv(b+1), N, nv(b) | 1 << 8 | 1 << 9 | 1 << 11]
                ent[1] += [q(b+1), kv(b+1), N, nv(b+1) | 1 << 8 | 1 << 11]
            else:
                n = b + 1
                assert n >= 2 and N == (n + 1) // 2
                n0 = n - N
                d = N - n0
                ent[0] += [q(b), kv(b), N, nv(b) | 1 << 8 | 1 << 10 | 1 << 11]
                ent[1] += [q(b), kv(n0 - 1 + d), N, nv(b) | d << 9 | 1 << 10 | 1 << 11]
        for p in range(2):
            words += ent[p] + [0] * (16 - len(ent[p]))
    return words

THRB, OVH = 32, 4.0
def main(out):
    wg, st = sched.build(THRB, OVH)
    g = Gen()
    body = g.build(wg)
    hdr = open(f"cdna_kernels/{NAME}.s.ref").read().split("; Override launch")[0]
    s = hdr
    s += f"; @launch grid=(256,1,1) block=(256,1,1) lds={LDS_BYTES}\n"
    s += f""".amdgcn_target "amdgcn-amd-amdhsa--gfx950"
.text
.globl {NAME}_kernel
.p2align 8
.type {NAME}_kernel,@function
{NAME}_kernel:
"""
    s += body
    s += ".p2align 6\n.type jobtab,@object\njobtab:\n"
    w = table(wg)
    for i in range(0, len(w), 8):
        s += ".long " + ", ".join(f"{x:#x}" for x in w[i:i+8]) + "\n"
    s += f".size jobtab, {len(w)*4}\n"
    s += f""".section .rodata,"a"
.p2align 6
.amdhsa_kernel {NAME}_kernel
  .amdhsa_next_free_vgpr 392
  .amdhsa_next_free_sgpr 102
  .amdhsa_accum_offset 256
  .amdhsa_group_segment_fixed_size 0
  .amdhsa_kernarg_size 56
  .amdhsa_user_sgpr_count 2
  .amdhsa_user_sgpr_kernarg_segment_ptr 1
  .amdhsa_system_sgpr_workgroup_id_x 1
.end_amdhsa_kernel
"""
    open(out, "w").write(s)

if __name__ == "__main__":
    args = [a for a in sys.argv[1:] if not a.startswith('-')]
    if '-stamps' in sys.argv: STAMPS = True
    for a in sys.argv[1:]:
        if a.startswith('-D'):
            k, v = a[2:].split('=')
            globals()[k] = (' nt' if v == '1' else '') if k.startswith('NT_') else eval(v)
    main(args[0] if args else f"cdna_kernels/{NAME}.s")
```

```python
import sys, struct, math
from asmlib import *
import sched

NAME = "standalone__ragged_sequences_varlen_flash_attn__ragged"
T_TOK = 7180
QBYTES = T_TOK * 16 * 256
KBYTES = T_TOK * 4 * 256
def f32(x): return struct.unpack('<I', struct.pack('<f', x))[0]
C_SCALE = f32(math.log2(math.e) / math.sqrt(128.0))
THR = f32(2.0 ** 40)
NEGBIG = f32(-1.0e30)
LDS_BYTES = 163840
NT_Q = ' nt'; NT_KV = ''; NT_O = ' nt'
WARM = False
CODEWARM = False
DBG = False
NT_PF = ' nt'
X_NOST = False; X_NOSTG = False; X_NOPF = False; X_NOBAR = False; X_NOVM = False; X_NODMA = False; X_NOLDS = False; X_NOSALU = False

DKR = {'A': [0, 1], 'B': [48, 49, 50, 51]}
DVR = {'A': [78, 79], 'B': [52, 53, 54, 55]}
DQ = 8
V_WARM = 12
V_DUMMY = 13
V_M16 = 14; V_LANE = 15
MASK = 16; MJ = 32
VADDR = 56; KADDR = 60
MC = 68; L = 70; TT = 74
P = 80; S = 96; O = 128
AQ = 0; AK = 64; AV = 96; AZ = 128
OV = MJ; STW = MJ + 4; STR = MJ + 5; XW = MJ + 6; XR = MJ + 7; XM = MJ + 8; XN = MJ + 9; E0 = MJ + 10; E1 = MJ + 11; FO = MJ + 12; FT = MJ + 14
S_FIRST, S_WSEL, S_Q2, S_QSO2, S_QM02 = 3, 4, 5, 6, 7
SRD_Q, SRD_K, SRD_V, SRD_O = 8, 12, 16, 20
S_C, S_THR, S_OOB, S_W, S_PAIR, S_HP = 24, 25, 26, 27, 28, 29
S_RET = 30; S_TAB = 32; S_J = 36
S_QOFF, S_VOFF, S_REM, S_KUSE, S_VUSE, S_KT, S_QCNT, S_QSO, S_QM0, S_QUSE = range(40, 50)
S_T0 = 50
S_M0K = 60; S_M0V = 64; S_RING = 68; S_QADJ = 69; S_QADJV = 70; S_QMADJ = 71
S_N = 72; S_TRASH = 76; S_QST = 77; S_STG = 78; S_QST2 = 79
S_JT = 88; S_MBA = 96; S_MBB = 97

def vr(b, n): return f"v[{b}:{b+n-1}]"
def ar(b, n): return f"a[{b}:{b+n-1}]"
def sr(b, n): return f"s[{b}:{b+n-1}]"
G = {'A': 2, 'B': 4}

def mfma_q(x, s, first_c):
    c = first_c if s == 0 else vr(S + 16*x, 16)
    return f"v_mfma_f32_32x32x16_bf16 {vr(S+16*x,16)}, {ar(AK+4*s,4)}, {ar(AQ+32*x+4*s,4)}, {c}"
def mfma_v(x, j):
    u, db = j // 4, j % 4
    o = vr(O + 64*x + 16*db, 16)
    return f"v_mfma_f32_32x32x16_bf16 {o}, {ar(AV+4*j,4)}, {vr(P+8*x+4*u,4)}, {o}"
def mfma_z(i):
    return f"v_mfma_f32_32x32x16_bf16 {vr(O+16*i,16)}, {ar(AZ,4)}, {ar(AZ,4)}, 0"
def kread(s, slot):
    return f"ds_read_b128 {ar(AK+4*s,4)}, v{KADDR+s} offset:{slot*8192}"
def vread(j, e, slot):
    u, db = j // 4, j % 4
    return f"ds_read_b64_tr_b16 {ar(AV+4*j+2*e,2)}, v{VADDR+db} offset:{32768 + slot*8192 + (16*u+8*e)*256}"
def dma_k(sh, i, suse=S_KUSE):
    return f"buffer_load_dwordx4 v{DKR[sh][i]}, {sr(SRD_K,4)}, s{suse} offen offset:{i*1024}{NT_KV if suse == S_KUSE else NT_PF} lds"
def dma_v(sh, i, suse=S_VUSE):
    return f"buffer_load_dwordx4 v{DVR[sh][i]}, {sr(SRD_V,4)}, s{suse} offen offset:{i*1024}{NT_KV if suse == S_VUSE else NT_PF} lds"
def dma_q(i=0):
    return f"buffer_load_dwordx4 v{DQ+i}, {sr(SRD_Q,4)}, s{S_QUSE} offen{NT_Q} lds"
Q_PRE = [f"s_cmp_gt_i32 s{S_QCNT}, 0",
         f"s_cselect_b32 s{S_QUSE}, s{S_QSO}, s{S_OOB}",
         f"s_cselect_b32 m0, s{S_QM0}, s{S_TRASH}"]
Q_POST = [f"s_add_u32 s{S_QSO}, s{S_QSO}, 0x4000",
          f"s_add_u32 s{S_QM0}, s{S_QM0}, 0x400",
          f"s_sub_u32 s{S_QCNT}, s{S_QCNT}, 1",
          f"s_cmp_eq_u32 s{S_QCNT}, 8",
          f"s_cselect_b32 s{S_QADJ}, s{S_QADJV}, 0",
          f"s_cselect_b32 s{S_QM0}, s{S_QMADJ}, s{S_QM0}",
          f"s_add_u32 s{S_QSO}, s{S_QSO}, s{S_QADJ}"]
def opF(x, e): return f"v_fma_f32 v{TT+e%4}, v{S+16*x+e}, s{S_C}, -v{MC+x}"
def opE(x, e): return f"v_exp_f32 v{TT+e%4}, v{TT+e%4}"
def opA(x, e, par):
    src = L + 2*x + (par ^ 1) if e == 0 else L + 2*x + par
    return f"v_add_f32 v{L+2*x+par}, v{src}, v{TT+e%4}"
def opC(x, k): return f"v_cvt_pk_bf16_f32 v{P+8*x+k}, v{TT+(2*k)%4}, v{TT+(2*k+1)%4}"

STAMPS = False
def stamp(b, real=False):
    if not STAMPS: return
    b.e(f"""{'s_memrealtime' if real else 's_memtime'} s[80:81]
            s_waitcnt lgkmcnt(0)
            v_mov_b32 v6, s80
            v_mov_b32 v7, s82
            s_add_u32 s82, s82, 4
            buffer_store_dword v6, v7, s[84:87], 0 offen""")

def cost(t):
    op = t.split()[0]
    if op.endswith(':'): return 0
    if op.startswith('v_exp') or op.startswith('v_rcp') or op.startswith('buffer'): return 2
    if op == 's_nop': return int(t.split()[1]) + 1
    return 1

def weave(b, mfmas, mem, valu, budget=6, mem_per_gap=2):
    mem = list(mem); valu = list(valu)
    for m in mfmas:
        b.e(m)
        used = 0
        for _ in range(mem_per_gap):
            if mem:
                it = mem.pop(0)
                for t in it: b.e(t); used += cost(t)
        while valu and used + cost(valu[0]) <= budget:
            t = valu.pop(0); b.e(t); used += cost(t)
    for it in mem:
        for t in it: b.e(t)
    for t in valu: b.e(t)

class Gen:
    def __init__(self):
        self.blocks = {}
        self.order = []
        self.stubs = Block("stubs")
        self.nstub = 0
    def add(self, b):
        self.blocks[b.name] = b; self.order.append(b.name); return b
    def uid(self):
        self.nstub += 1; return self.nstub

    def check_site(self, b, x, par):
        k = self.uid()
        b.e(f"s_cbranch_vccnz L_stub{k}")
        b.e(f"L_ret{k}:")
        self.stubs.e(f"L_stub{k}:")
        self.stubs.e(f"s_call_b64 {sr(S_RET,2)}, L_rare_{x}_{par}")
        self.stubs.e(f"s_branch L_ret{k}")

    def plan_mem(self, g):
        cap = [1 if i % 2 == 0 else 2 for i in range(32)]
        cap[15] = 0; cap[31] = 0
        place = {i: [] for i in range(32)}
        kd = [17, 19, 21, 23] if g == 4 else [19, 23]
        vd = [7, 9, 11, 13] if g == 4 else [9, 13]
        for i, gp in enumerate(kd): place[gp].append(('KD', i)); cap[gp] -= 2
        for i, gp in enumerate(vd): place[gp].append(('VD', i)); cap[gp] -= 2
        place[27].append(('QD',)); cap[27] -= 2
        items = [(16 + s, 30, ('K', s)) for s in range(8)]
        for j in range(8):
            for e in range(2): items.append((24 + j, 38 if j < 4 else 42, ('V', j, e)))
        pend = list(items)
        for t in range(16, 48):
            gp = t % 32
            while cap[gp] > 0:
                c = [it for it in pend if it[0] <= t]
                if not c: break
                it = min(c, key=lambda i: (i[1], i[0]))
                assert it[1] >= t, ("deadline miss", it, t)
                pend.remove(it); cap[gp] -= 1
                place[gp].append(it[2])
        assert not pend
        for gp in place:
            place[gp].sort(key=lambda it: 0 if it[0] in ('K', 'V') else 1)
        return place

    def sm_ops(self, gap, ph):
        ops = []
        s_par = ph % 2
        def elem(idx):
            if 0 <= idx < 16: return (1, idx, s_par, 'b0')
            if 16 <= idx < 32: return (0, idx - 16, s_par ^ 1, 'a1')
            if 32 <= idx < 48: return (1, idx - 32, s_par ^ 1, 'b1')
            return None
        x, e, par, tag = elem(gap + 1); ops.append((tag, opA(x, e, par)))
        if gap % 2 == 0:
            x, e, par, tag = elem(gap); ops.append((tag, opC(x, e // 2)))
        x, e, par, tag = elem(gap + 3); ops.append((tag, opF(x, e)))
        x, e, par, tag = elem(gap + 2); ops.append((tag, opE(x, e)))
        return ops

    def sm_stream(self, gaps, ph, tags):
        out = []
        for gp in gaps:
            ops = [t for tag, t in self.sm_ops(gp, ph) if tag in tags]
            ex = [t for t in ops if t.startswith('v_exp')]
            ot = [t for t in ops if not t.startswith('v_exp')]
            if ex and ot: out += ex + ot
            elif ex: out += ex + ["s_nop 0"]
            else: out += (["s_nop 0"] if ot else []) + ot
        return out

    def step(self, shape, ph):
        g = G[shape]
        b = Block(f"loop_{shape}_{ph}")
        b.e(f"L_loop_{shape}_{ph}:")
        place = self.plan_mem(g)
        free = {i: [] for i in range(32)}
        seq = []
        for gp in range(32):
            for it in place[gp]:
                if it[0] in ('K', 'V'): seq.append((gp, it))
        def count_after(need_items, wait_gap):
            lin = [(gp - 32, it) for gp, it in seq] + [(gp, it) for gp, it in seq]
            lin = [(t, it) for t, it in lin if t < wait_gap]
            last = max(max(i for i, (t, it) in enumerate(lin) if it == n) for n in need_items)
            return len(lin) - 1 - last
        wk = count_after([('K', s) for s in range(8)], 31)
        free[31].append(f"s_waitcnt lgkmcnt({wk})")
        wv0 = count_after([('V', j, e) for j in range(4) for e in range(2)], 7)
        free[7].append(f"s_waitcnt lgkmcnt({wv0})")
        wv1 = count_after([('V', j, e) for j in range(4, 8) for e in range(2)], 11)
        free[11].append(f"s_waitcnt lgkmcnt({wv1})")
        assert max(wk, wv0, wv1) <= 15
        if not X_NOVM: free[15].append(f"s_waitcnt vmcnt({4*g+2})")
        if not X_NOBAR: free[16].append("s_barrier")
        free[20].append(Q_PRE[0]); free[22].append(Q_PRE[1]); free[24].append(Q_PRE[2])
        free[28].append(Q_POST[0]); free[29].append(Q_POST[1])
        free[5].append(Q_POST[2]); free[6].append(Q_POST[3]); free[8].append(Q_POST[4]); free[9].append(Q_POST[5]); free[19].append(Q_POST[6])
        free[0].append(f"s_cmp_gt_i32 s{S_REM}, 0")
        free[1].append(f"s_cselect_b32 s{S_VUSE}, s{S_VOFF}, s{S_OOB}")
        free[2].append(f"s_cselect_b32 m0, s{S_M0V + (ph+3)%4}, s{S_TRASH}")
        free[3].append(f"s_sub_u32 s{S_KT}, s{S_VOFF}, 0x10000")
        free[4].append(f"s_sub_u32 s{S_VOFF}, s{S_VOFF}, 0x8000")
        free[10].append(f"s_cmp_gt_i32 s{S_REM}, 2")
        free[12].append(f"s_cselect_b32 s{S_KUSE}, s{S_KT}, s{S_OOB}")
        free[14].append(f"s_cselect_b32 m0, s{S_M0K + (ph+5)%4}, s{S_TRASH}")
        free[18].append(f"s_sub_u32 s{S_REM}, s{S_REM}, 1")
        free[30].append(f"s_cmp_ge_i32 s{S_REM}, -1")
        for gp in range(32):
            if gp < 8: b.e(mfma_q(0, gp, "0"))
            elif gp < 16: b.e(mfma_v(0, gp - 8))
            elif gp < 24: b.e(mfma_q(1, gp - 16, "0"))
            else: b.e(mfma_v(1, gp - 24))
            for t in free[gp]: b.e(t)
            for it in place[gp]:
                if X_NODMA and it[0] in ('KD', 'VD', 'QD'): continue
                if X_NOLDS and it[0] in ('K', 'V'): continue
                if it[0] == 'K': b.e(kread(it[1], (ph + 2) % 4 if gp >= 16 else (ph + 1) % 4))
                elif it[0] == 'V': b.e(vread(it[1], it[2], (ph + 1) % 4 if gp >= 16 else ph % 4))
                elif it[0] == 'KD': b.e(dma_k(shape, it[1]))
                elif it[0] == 'VD': b.e(dma_v(shape, it[1]))
                elif it[0] == 'QD': b.e(dma_q(ph))
            ops = self.sm_ops(gp, ph)
            if gp == 15:
                b.e(f"v_cmp_nge_f32 vcc, s{S_THR}, v{L+2*1+ph%2}")
            if gp == 31:
                b.e(f"v_cmp_nge_f32 vcc, s{S_THR}, v{L+2*0+(ph+1)%2}")
            for tag, t in ops: b.e(t)
            if gp == 15: self.check_site(b, 1, ph % 2)
            if gp == 31: self.check_site(b, 0, (ph + 1) % 2)
        b.e(f"s_cbranch_scc0 L_tail_{shape}_{(ph+1)%4}")
        if ph == 3: b.e(f"s_branch L_loop_{shape}_0")
        return b

    def dma_v_part(self, b, ph, shape):
        for t in Q_POST[2:]: b.e(t)
        b.e(f"""s_cmp_gt_i32 s{S_REM}, 0
                s_cselect_b32 s{S_VUSE}, s{S_VOFF}, s{S_OOB}
                s_cselect_b32 m0, s{S_M0V + (ph+3)%4}, s{S_TRASH}
                s_sub_u32 s{S_KT}, s{S_VOFF}, 0x10000
                s_sub_u32 s{S_VOFF}, s{S_VOFF}, 0x8000""")
        for i in range(G[shape]): b.e(dma_v(shape, i))
    def dma_k_part(self, ph, shape):
        return [f"s_cmp_gt_i32 s{S_REM}, 2",
                f"s_cselect_b32 s{S_KUSE}, s{S_KT}, s{S_OOB}",
                f"s_cselect_b32 m0, s{S_M0K + (ph+5)%4}, s{S_TRASH}",
                f"s_sub_u32 s{S_REM}, s{S_REM}, 1"] + [dma_k(shape, i) for i in range(G[shape])]
    def dma_q_part(self, dummy=False):
        if dummy:
            return [f"s_mov_b32 m0, s{S_TRASH}", f"s_mov_b32 s{S_QUSE}, s{S_OOB}", f"s_add_u32 s{S_QCNT}, s{S_QCNT}, 1", dma_q()]
        return Q_PRE + [Q_POST[0], dma_q(0), Q_POST[1]]

    def warm(self):
        N = S_N
        k = self.uid()
        o = [f"s_bitcmp1_b32 s{N+3}, 11", f"s_cbranch_scc0 L_wm{k}",
             f"s_cmp_eq_u32 s{S_HP}, 0", f"s_cbranch_scc0 L_wv{k}"]
        for u in range(4):
            o += [f"s_sub_u32 s{S_T0}, s{N+1}, {u*0x8000}", f"s_cmp_gt_i32 s{N+2}, {u}", f"s_cselect_b32 s{S_T0}, s{S_T0}, s{S_OOB}",
                  f"buffer_load_dword v{V_DUMMY}, v{V_WARM}, {sr(SRD_K,4)}, s{S_T0} offen"]
        o += [f"s_branch L_wm{k}", f"L_wv{k}:"]
        for u in range(3):
            o += [f"s_sub_u32 s{S_T0}, s{N+1}, {u*0x8000}", f"s_cmp_gt_i32 s{N+2}, {u}", f"s_cselect_b32 s{S_T0}, s{S_T0}, s{S_OOB}",
                  f"buffer_load_dword v{V_DUMMY}, v{V_WARM}, {sr(SRD_V,4)}, s{S_T0} offen"]
        o += [f"L_wm{k}:"]
        return o

    def pf_group(self, kind, u, N=S_N):
        k = self.uid()
        m0r = (S_M0K if kind == 'K' else S_M0V) + u
        d = dma_k if kind == 'K' else dma_v
        T = S_T0 + 4
        return [f"s_sub_u32 s{T}, s{N+1}, {u*0x8000}",
                f"s_cmp_gt_i32 s{N+2}, {u}",
                f"s_cselect_b32 s{T}, s{T}, s{S_OOB}",
                f"s_cselect_b32 m0, s{m0r}, s{S_TRASH}",
                f"s_bitcmp1_b32 s{N+3}, 10",
                f"s_cbranch_scc1 L_pfb{k}",
                d('A', 0, T), d('A', 1, T),
                f"s_branch L_pfe{k}",
                f"L_pfb{k}:",
                d('B', 0, T), d('B', 1, T), d('B', 2, T), d('B', 3, T),
                f"L_pfe{k}:"]

    def hookB(self, b, clear, wait_first, wait_norm):
        k = self.uid()
        b.e(f"""s_cmp_eq_u32 s{S_FIRST}, 0
                s_cbranch_scc1 L_hb{k}""")
        for kind, u in (('K', 2), ('V', 1), ('K', 3)):
            for t in self.pf_group(kind, u, S_J): b.e(t)
        b.e(f"""s_mov_b32 m0, s{S_TRASH}
                s_mov_b32 s{S_QUSE}, s{S_OOB}""")
        for _ in range(5): b.e(dma_q())
        if clear: b.e(f"s_mov_b32 s{S_FIRST}, 0")
        b.e(f"s_waitcnt vmcnt({wait_first})")
        b.e(f"s_branch L_hc{k}")
        b.e(f"L_hb{k}:")
        b.e(f"s_waitcnt vmcnt({wait_norm})")
        b.e(f"L_hc{k}:")

    def idle_step(self, shape):
        g = G[shape]
        ph = 3
        b = Block(f"idle_{shape}")
        b.e(f"L_idle_{shape}:")
        self.dma_v_part(b, ph, shape)
        self.hookB(b, shape == 'B', (16 if shape == 'A' else 0) + g + 3*g + 5, 4*g)
        b.e("s_barrier")
        for t in self.dma_k_part(ph, shape): b.e(t)
        for t in self.dma_q_part(True): b.e(t)
        return b

    def qreads(self, b, x):
        for s in range(8):
            b.e(f"ds_read_b128 {ar(AQ+32*x+4*s,4)}, v{P+8*x+s}")

    def maxtree(self, x):
        s0 = S + 16*x; t = 2 + 2*x
        o = [f"v_max3_f32 v{t}, v{s0}, v{s0+1}, v{s0+2}",
             f"v_max3_f32 v{t+1}, v{s0+3}, v{s0+4}, v{s0+5}"]
        for i in range(6, 14, 4):
            o += [f"v_max3_f32 v{t}, v{t}, v{s0+i}, v{s0+i+1}", f"v_max3_f32 v{t+1}, v{t+1}, v{s0+i+2}, v{s0+i+3}"]
        o += [f"v_max3_f32 v{t}, v{t}, v{s0+14}, v{s0+15}",
              f"v_max_f32 v{t}, v{t}, v{t+1}",
              f"v_mov_b32 v{t+1}, v{t}",
              "s_nop 1",
              f"v_permlane32_swap_b32 v{t}, v{t+1}",
              f"v_max_f32 v{t}, v{t}, v{t+1}",
              f"v_mul_f32 v{MC+x}, s{S_C}, v{t}"]
        return o

    def head(self, shape, f):
        g = G[shape]
        ph = (f - 1) % 4
        b = Block(f"head_{shape}_{f}")
        b.e(f"L_head_{shape}_{f}:")
        if shape == 'A' and f == 1:
            b.e(f"""s_cmp_eq_u32 s{S_FIRST}, 0
                    s_cbranch_scc1 L_hq1_skip
                    s_mov_b32 s{S_FIRST}, 0
                    s_waitcnt vmcnt({g + 3*g + 5 + g + 1})""")
            self.qreads(b, 0); self.qreads(b, 1)
            b.e("L_hq1_skip:")
        for s in range(8): b.e(kread(s, f % 4))
        b.e(mfma_z(0))
        self.dma_v_part(b, ph, shape)
        b.e(mfma_z(1))
        b.e(f"v_mov_b32 v{L+0+((f-1)%2)}, 0")
        b.e(f"v_mov_b32 v{L+2+((f-1)%2)}, 0")
        b.e(mfma_z(2))
        b.e("s_waitcnt lgkmcnt(0)")
        for s in range(8): b.e(mfma_q(0, s, vr(MJ, 16)))
        if shape == 'A' and f == 0:
            b.e(f"""s_cmp_eq_u32 s{S_FIRST}, 0
                    s_cbranch_scc1 L_hq_skip
                    s_waitcnt vmcnt({3*g})""")
            self.qreads(b, 1)
            b.e("s_waitcnt lgkmcnt(0)")
            b.e("L_hq_skip:")
        sma = self.sm_stream(range(13, 29), ph, ('a1',))
        rest = self.sm_stream(range(29, 32), ph, ('a1', 'b1'))
        valu = ["s_nop 5", "s_nop 4"] + self.maxtree(0) + sma
        qb = [mfma_q(1, s, vr(MJ, 16)) for s in range(8)]
        tmp = Block()
        vv = list(valu)
        for m in qb:
            tmp.e(m); used = 0
            while vv and used + cost(vv[0]) <= 6:
                t = vv.pop(0); tmp.e(t); used += cost(t)
        b.ext(tmp)
        if f == 0: self.hookB(b, True, g + 3*g + 5, 4*g)
        else: b.e(f"s_waitcnt vmcnt({4*g+1})")
        b.e("s_barrier")
        mem = [[kread(s, (f + 1) % 4)] for s in range(8)] + [self.dma_k_part(ph, shape)] + [self.dma_q_part(f == 0)]
        mem += [[vread(j, 0, f % 4), vread(j, 1, f % 4)] for j in range(8)]
        n1 = 12
        valu2 = vv[:n1] + self.maxtree(1) + vv[n1:] + rest
        weave(b, [mfma_z(i) for i in range(3, 8)], mem, valu2, budget=7, mem_per_gap=4)
        if WARM:
            for t in self.warm(): b.e(t)
        if DBG:
            b.e("""s_memtime s[80:81]
                   s_waitcnt lgkmcnt(0)
                   s_sub_u32 s101, s101, s80
                   s_sub_u32 s80, s80, s82
                   s_cmp_eq_u32 s100, 0
                   s_cselect_b32 s100, s80, s100""")
        b.e("s_waitcnt lgkmcnt(0)")
        stamp(b)
        b.e(f"s_cmp_ge_i32 s{S_REM}, -1")
        b.e(f"s_cbranch_scc0 L_tail_{shape}_{f%4}")
        b.e(f"s_branch L_loop_{shape}_{f%4}")
        return b

    def pfsetup(self):
        N = S_N
        o = [f"s_lshl_b32 s{S_T0}, s{S_PAIR}, 16",
             f"s_bitcmp1_b32 s{N+3}, 10",
             f"s_cselect_b32 s{S_RING}, s{S_T0}, 0",
             f"s_cselect_b32 s{S_T0}, s{S_MBB}, s{S_MBA}"]
        for i in range(4):
            o.append(f"s_add_u32 s{S_M0K+i}, s{S_T0}, {i*8192}")
            o.append(f"s_add_u32 s{S_M0V+i}, s{S_T0}, {32768+i*8192}")
        return o

    def tail(self, shape, ph):
        g = G[shape]
        b = Block(f"tail_{shape}_{ph}")
        b.e(f"L_tail_{shape}_{ph}:")
        stamp(b)
        if DBG:
            b.e("""s_memtime s[80:81]
                   s_waitcnt lgkmcnt(0)
                   s_add_u32 s101, s101, s80""")
        place = self.plan_mem(g)
        for gp in range(16):
            for it in place[gp]:
                if it[0] == 'V': b.e(vread(it[1], it[2], ph % 4))
        k = self.uid()
        b.e(f"""s_lshl_b32 s{S_T0}, s{S_Q2}, 4
                s_max_i32 s{S_T0}, s{S_T0}, s{S_QCNT}
                s_cmp_gt_i32 s{S_T0}, 1
                s_cbranch_scc0 L_nq{k}
                s_call_b64 {sr(S_RET,2)}, L_qrem_{ph}
                L_nq{k}:""")
        smb = self.sm_stream(range(0, 15), ph, ('b0',))
        for t in smb[:10]: b.e(t)
        b.e("s_waitcnt lgkmcnt(0)")
        pfs = self.pfsetup()
        weave(b, [mfma_v(0, j) for j in range(8)],
              [["s_barrier"] + pfs[:4], pfs[4:8], pfs[8:], self.pf_group('K', 0), [], [], self.pf_group('K', 1)], smb[10:], budget=8, mem_per_gap=1)
        b.e(f"v_cmp_nge_f32 vcc, s{S_THR}, v{L+2*1+ph%2}")
        b.e("s_nop 1")
        self.check_site(b, 1, ph % 2)
        ec = [f"v_mov_b32 v2, v{L+0+ph%2}", f"v_mov_b32 v3, v{L+0+ph%2}", f"v_mov_b32 v4, v{L+2+ph%2}", f"v_mov_b32 v5, v{L+2+ph%2}"] + self.epi_common(shape)
        weave(b, [mfma_v(1, j) for j in range(8)], [], ec, budget=6)
        b.e(f"s_branch L_epi_{shape}")
        return b

    def store_chunks(self, b, subs, scale_ops, extra):
        extra = list(extra)
        chunks = [(x, dh) for x in subs for dh in range(2)]
        R = S + 16
        WA = P + 8
        def reads(ci):
            o = []
            for kk in range(4):
                off = (ci % 2) * 4096 + kk * 1024
                if kk % 2 == 0: o.append(f"ds_read_b128 {vr(R+4*kk,4)}, v{STR} offset:{off}")
                else: o.append(f"ds_read2st64_b64 {vr(R+4*kk,4)}, v{E0} offset0:{off//512} offset1:{off//512}")
            return o
        def stores(ci):
            x, dh = chunks[ci]
            return [f"buffer_store_dwordx4 {vr(R+4*kk,4)}, v{OV+kk}, {sr(SRD_O,4)}, s{S_QOFF} offen offset:{x*256 + dh*128}{NT_O}" for kk in range(4)]
        nch = len(chunks)
        for ci in range(nch + 2):
            st = stores(ci - 2) if ci >= 2 else []
            if st: b.e(f"s_waitcnt lgkmcnt({8 if ci - 1 < nch else 0})")
            if ci < nch:
                x, dh = chunks[ci]
                n = 0
                for dbl in range(2):
                    db = 2*dh + dbl
                    for gq in range(4):
                        tb = P + 4 * (n % 2); X = S + 2 * n
                        for q in range(0, 4, 2):
                            for t in scale_ops(x, 16*db + 4*gq + q, tb + q): b.e(t)
                        b.e(f"v_cvt_pk_bf16_f32 v{X}, v{tb}, v{tb+1}")
                        b.e(f"v_cvt_pk_bf16_f32 v{X+1}, v{tb+2}, v{tb+3}")
                        if st and n % 2 == 0: b.e(st.pop(0))
                        elif extra and n % 4 == 1:
                            for t in extra.pop(0): b.e(t)
                        n += 1
            else:
                while extra:
                    for t in extra.pop(0): b.e(t)
            for t in st: b.e(t)
            if 1 <= ci <= nch:
                for kk in range(4):
                    off = ((ci - 1) % 2) * 4096 + kk * 1024
                    if kk % 2 == 0: b.e(f"ds_read_b128 {vr(R+4*kk,4)}, v{STR} offset:{off}")
                    else:
                        b.e(f"ds_read_b64 {vr(R+4*kk,2)}, v{STR} offset:{off+8}")
                        b.e(f"ds_read_b64 {vr(R+4*kk+2,2)}, v{STR} offset:{off}")
            if ci < nch:
                for n in range(8):
                    b.e(f"ds_write_b64 v{WA+n}, {vr(S+2*n,2)} offset:{(ci%2)*4096}")

    def epi_common(self, shape):
        J = S_J
        o = f"""s_and_b32 s{S_T0}, s{J+3}, 63
                v_and_b32 v6, 31, v{V_LANE}
                v_lshrrev_b32 v7, 5, v{V_LANE}
                v_lshlrev_b32 v{STW}, 7, v6
                v_bfe_u32 v{E0}, v{V_LANE}, 3, 1
                v_xor_b32 v7, v7, v{E0}
                v_lshl_add_u32 v{STW}, v7, 3, v{STW}
                v_and_b32 v6, 7, v{V_LANE}
                v_lshl_add_u32 v{STW}, v6, 4, v{STW}
                v_add_u32 v{STW}, s{S_STG}, v{STW}
                v_permlane32_swap_b32 v2, v3
                v_permlane32_swap_b32 v4, v5
                v_lshrrev_b32 v6, 3, v{V_LANE}
                v_and_b32 v7, 7, v{V_LANE}
                v_add_f32 v2, v2, v3
                v_add_f32 v4, v4, v5
                v_xor_b32 v{STR}, v6, v7
                v_lshlrev_b32 v{STR}, 4, v{STR}
                v_lshl_add_u32 v{STR}, v6, 7, v{STR}
                v_add_u32 v{STR}, s{S_STG}, v{STR}
                v_lshlrev_b32 v7, 4, v7
                v_lshl_add_u32 v7, v6, 12, v7
                v_mov_b32 v{E1}, s{S_OOB}""".split('\n')
        o = [t.strip() for t in o]
        for kk in range(4):
            o += [f"v_add_u32 v{E0}, {8*kk}, v6",
                  f"v_cmp_gt_u32 vcc, s{S_T0}, v{E0}",
                  f"v_add_u32 v{E0}, {kk*32768}, v7",
                  "s_nop 0",
                  f"v_cndmask_b32 v{OV+kk}, v{E1}, v{E0}, vcc"]
        if shape == 'A':
            o += ["v_rcp_f32 v2, v2", "v_rcp_f32 v4, v4"]
        else:
            o += [f"s_lshl_b32 s{S_T0}, s{S_PAIR}, 16",
                  f"s_lshl_b32 s{S_T0+1}, s{S_HP}, 14",
                  f"s_add_u32 s{S_T0}, s{S_T0}, s{S_T0+1}",
                  f"s_add_u32 s{S_T0}, s{S_T0}, 0x8000",
                  f"s_xor_b32 s{S_T0+1}, s{S_T0}, 0x10000",
                  f"v_lshlrev_b32 v6, 4, v{V_LANE}",
                  f"v_add_u32 v{XW}, s{S_T0}, v6",
                  f"v_add_u32 v{XR}, s{S_T0+1}, v6",
                  f"s_lshl_b32 s{S_T0}, s{S_W}, 9",
                  f"s_add_u32 s{S_T0}, s{S_T0}, 0x6000",
                  f"s_xor_b32 s{S_T0+1}, s{S_T0}, 0x400",
                  f"v_lshlrev_b32 v6, 3, v{V_LANE}",
                  f"v_add_u32 v{XM}, s{S_T0}, v6",
                  f"v_add_u32 v{XN}, s{S_T0+1}, v6"]
        return o

    def epilogue(self, shape):
        b = Block(f"epi_{shape}")
        b.e(f"L_epi_{shape}:")
        stamp(b)
        for n in range(8): b.e(f"v_xor_b32 v{P+8+n}, {n*16}, v{STW}")
        def ex(): return [self.pf_group('V', 0), self.pf_group('K', 2), self.pf_group('V', 1), self.pf_group('K', 3)]
        if shape == 'A':
            b.e("s_nop 0")
            self.store_chunks(b, (0, 1), lambda x, i, d: [f"v_pk_mul_f32 {vr(d,2)}, {vr(O+64*x+i,2)}, {vr(2+2*x,2)} op_sel_hi:[1,0]"], ex())
            b.e(f"s_mov_b32 s{S_WSEL}, 0")
            b.e("s_branch L_job")
        else:
            b.e(f"""s_cmp_eq_u32 s{S_PAIR}, 0
                    s_cbranch_scc0 L_epiB_1""")
            for own in range(2):
                oth = own ^ 1
                if own == 1: b.e("L_epiB_1:")
                b.e(f"v_mov_b32 v6, v{MC+oth}")
                b.e(f"v_mov_b32 v7, v{2+2*oth}")
                b.e("s_nop 7")
                b.e(f"ds_write_b64 v{XM}, v[6:7]")
                for i in range(16):
                    b.e(f"ds_write_b128 v{XW}, {vr(O+64*oth+4*i,4)} offset:{i*1024}")
                b.e("s_waitcnt lgkmcnt(0)")
                b.e("s_barrier")
                b.e(f"ds_read_b64 v[6:7], v{XN}")
                for i in range(16):
                    b.e(f"ds_read_b128 {vr(O+64*oth+4*i,4)}, v{XR} offset:{i*1024}")
                lo = 2 + 2*own
                b.e(f"""s_waitcnt lgkmcnt(15)
                        s_nop 0
                        s_waitcnt lgkmcnt(15)
                        v_max_f32 v{FO}, v{MC+own}, v6
                        v_sub_f32 v{FT}, v6, v{FO}
                        v_sub_f32 v{FO}, v{MC+own}, v{FO}
                        v_exp_f32 v{FT}, v{FT}
                        v_exp_f32 v{FO}, v{FO}
                        s_nop 0
                        v_mul_f32 v7, v7, v{FT}
                        v_fma_f32 v7, v{lo}, v{FO}, v7
                        v_rcp_f32 v7, v7
                        s_nop 0
                        v_mul_f32 v{FO}, v{FO}, v7
                        v_mul_f32 v{FT}, v{FT}, v7
                        s_waitcnt lgkmcnt(0)
                        s_barrier""")
                self.store_chunks(b, (own,), lambda x, i, d, own=own, oth=oth: [
                    f"v_pk_mul_f32 {vr(d,2)}, {vr(O+64*own+i,2)}, {vr(FO,2)} op_sel_hi:[1,0]",
                    f"v_pk_fma_f32 {vr(d,2)}, {vr(O+64*oth+i,2)}, {vr(FT,2)}, {vr(d,2)} op_sel_hi:[1,0,1]"], ex())
                b.e(f"s_mov_b32 s{S_WSEL}, 1")
                b.e("s_branch L_job")
        return b

    def rare(self, x, par):
        b = Block(f"rare_{x}_{par}")
        b.e(f"L_rare_{x}_{par}:")
        s0 = S + 16*x
        b.e("s_nop 15")
        b.e(f"v_max3_f32 v2, v{s0}, v{s0+1}, v{s0+2}")
        for i in range(3, 15, 2):
            b.e(f"v_max3_f32 v2, v2, v{s0+i}, v{s0+i+1}")
        b.e(f"v_max_f32 v2, v2, v{s0+15}")
        b.e("v_mov_b32 v3, v2")
        b.e("s_nop 1")
        b.e("v_permlane32_swap_b32 v2, v3")
        b.e("v_max_f32 v2, v2, v3")
        b.e(f"v_mul_f32 v2, s{S_C}, v2")
        b.e(f"v_max_f32 v2, v2, v{MC+x}")
        b.e(f"v_sub_f32 v3, v{MC+x}, v2")
        b.e("v_exp_f32 v3, v3")
        b.e(f"v_mov_b32 v{MC+x}, v2")
        b.e(f"v_mul_f32 v{L+2*x+par}, v3, v{L+2*x+(par^1)}")
        for i in range(64):
            b.e(f"v_mul_f32 v{O+64*x+i}, v3, v{O+64*x+i}")
        for k in range(8):
            b.e(f"v_fma_f32 v4, v{s0+2*k}, s{S_C}, -v{MC+x}")
            b.e(f"v_fma_f32 v5, v{s0+2*k+1}, s{S_C}, -v{MC+x}")
            b.e("v_exp_f32 v4, v4")
            b.e("v_exp_f32 v5, v5")
            b.e("s_nop 0")
            b.e(f"v_add_f32 v{L+2*x+par}, v{L+2*x+par}, v4")
            b.e(f"v_add_f32 v{L+2*x+par}, v{L+2*x+par}, v5")
            b.e(f"v_cvt_pk_bf16_f32 v{P+8*x+k}, v4, v5")
        b.e("s_nop 1")
        b.e(f"s_setpc_b64 {sr(S_RET,2)}")
        return b

    def prologue(self):
        b = Block("prologue")
        b.e(f"""s_cmp_ge_u32 s2, 256
                s_cbranch_scc1 L_end
                s_load_dwordx4 s[52:55], s[0:1], 0
                s_load_dwordx2 s[56:57], s[0:1], 16
                s_load_dwordx2 s[58:59], s[0:1], 32
                s_getpc_b64 {sr(S_TAB,2)}""")
        b.e("L_pc:")
        b.e(f"""s_add_u32 s{S_TAB}, s{S_TAB}, jobtab-L_pc
                s_addc_u32 s{S_TAB+1}, s{S_TAB+1}, 0
                v_lshrrev_b32 v1, 6, v0
                v_and_b32 v{V_LANE}, 63, v0
                v_readfirstlane_b32 s{S_W}, v1
                v_lshlrev_b32 v2, 7, v0
                s_getpc_b64 s[34:35]
                {'global_load_dword v13, v2, s[34:35]' if CODEWARM else 's_nop 0'}
                v_add_u32 v2, 0x8000, v2
                {'global_load_dword v13, v2, s[34:35]' if CODEWARM else 's_nop 0'}
                s_lshr_b32 s{S_PAIR}, s{S_W}, 1
                s_and_b32 s{S_HP}, s{S_W}, 1
                s_lshl_b32 s3, s2, 7
                s_lshl_b32 s4, s{S_PAIR}, 6
                s_add_u32 s3, s3, s4
                s_add_u32 s{S_TAB}, s{S_TAB}, s3
                s_addc_u32 s{S_TAB+1}, s{S_TAB+1}, 0
                s_load_dwordx4 {sr(S_N,4)}, {sr(S_TAB,2)}, 0
                s_load_dwordx8 {sr(S_JT,8)}, {sr(S_TAB,2)}, 16
                s_mov_b32 s{S_C}, {C_SCALE:#x}
                s_mov_b32 s{S_THR}, {THR:#x}
                s_mov_b32 s{S_OOB}, 0x80000000
                s_mov_b32 s{S_TRASH}, 0x3c000
                s_lshl_b32 s{S_STG}, s{S_PAIR}, 16
                s_lshl_b32 s3, s{S_HP}, 13
                s_add_u32 s{S_STG}, s{S_STG}, s3
                s_add_u32 s{S_STG}, s{S_STG}, 0xc000
                s_lshl_b32 s{S_MBA}, s{S_W}, 11
                s_lshl_b32 s{S_MBB}, s{S_PAIR}, 16
                s_lshl_b32 s3, s{S_HP}, 12
                s_add_u32 s{S_MBB}, s{S_MBB}, s3""")
        b.e(f"""v_lshrrev_b32 v5, 4, v{V_LANE}
                v_and_b32 v6, 15, v{V_LANE}
                v_xor_b32 v7, v6, v5
                v_lshlrev_b32 v7, 4, v7
                v_lshl_add_u32 v2, v5, 10, v7
                v_lshl_add_u32 v{DQ}, v5, 12, v7
                v_xor_b32 v{DQ+1}, 64, v{DQ}
                v_xor_b32 v{DQ+2}, 0x80, v{DQ}
                v_xor_b32 v{DQ+3}, 0xc0, v{DQ}
                v_lshrrev_b32 v4, 1, v{V_LANE}
                v_and_b32 v{V_WARM}, 1, v{V_LANE}
                v_lshlrev_b32 v{V_WARM}, 7, v{V_WARM}
                v_lshl_add_u32 v{V_WARM}, v4, 10, v{V_WARM}
                v_lshlrev_b32 v7, 2, v5
                v_xor_b32 v7, v6, v7
                v_lshlrev_b32 v7, 4, v7
                v_lshl_add_u32 v3, v5, 10, v7""")
        for sh in 'AB':
            b.e(f"s_lshl_b32 s5, s{S_W}, 1" if sh == 'A' else f"s_lshl_b32 s5, s{S_HP}, 2")
            for i in range(G[sh]):
                b.e(f"""s_add_u32 s3, s5, {i}
                        s_and_b32 s4, s3, 3
                        s_lshl_b32 s4, s4, 6
                        s_lshl_b32 s3, s3, 12
                        s_sub_u32 s3, s3, {i*1024}
                        v_xor_b32 v{DKR[sh][i]}, s4, v2
                        v_add_u32 v{DKR[sh][i]}, s3, v{DKR[sh][i]}
                        v_add_u32 v{DVR[sh][i]}, s3, v3""")
        b.e(f"""s_waitcnt lgkmcnt(0)
                s_mov_b32 s{SRD_Q}, s52
                s_mov_b32 s{SRD_Q+1}, s53
                s_mov_b32 s{SRD_Q+2}, {QBYTES}
                s_mov_b32 s{SRD_Q+3}, 0x00020000
                s_mov_b32 s{SRD_K}, s54
                s_mov_b32 s{SRD_K+1}, s55
                s_mov_b32 s{SRD_K+2}, {KBYTES}
                s_mov_b32 s{SRD_K+3}, 0x00020000
                s_mov_b32 s{SRD_V}, s56
                s_mov_b32 s{SRD_V+1}, s57
                s_mov_b32 s{SRD_V+2}, {KBYTES}
                s_mov_b32 s{SRD_V+3}, 0x00020000
                s_mov_b32 s{SRD_O}, s58
                s_mov_b32 s{SRD_O+1}, s59
                s_mov_b32 s{SRD_O+2}, {QBYTES}
                s_mov_b32 s{SRD_O+3}, 0x00020000""")
        if STAMPS:
            b.e(f"""s_load_dwordx2 s[84:85], s[0:1], 48
                    s_waitcnt lgkmcnt(0)
                    s_mov_b32 s86, 0x1000000
                    s_mov_b32 s87, 0x00020000
                    s_lshl_b32 s82, s2, 2
                    s_add_u32 s82, s82, s{S_W}
                    s_lshl_b32 s82, s82, 8""")
            stamp(b, True)
            stamp(b)
        if DBG:
            b.e(f"""s_load_dwordx2 s[84:85], s[0:1], 40
                    s_memrealtime s[80:81]
                    s_memtime s[82:83]
                    s_waitcnt lgkmcnt(0)
                    s_mov_b32 s86, 256
                    s_mov_b32 s87, 0x00020000
                    s_not_b32 s83, s80
                    s_mov_b32 s100, 0
                    s_mov_b32 s101, 0""")
        b.e(f"""s_mov_b32 s{S_J+3}, 0
                s_mov_b32 s{S_FIRST}, 1""")
        for t in self.pfsetup(): b.e(t)
        for t in self.pf_group('K', 0): b.e(t)
        self.qstate(b)
        b.e(f"""s_and_b32 s{S_T0}, s{S_N+3}, 0x600
                s_cmp_eq_u32 s{S_T0}, 0x200
                s_cbranch_scc1 L_noq""")
        b.e(f"s_call_b64 {sr(S_RET,2)}, L_qrem_0")
        b.e("L_noq:")
        for i in range(4): b.e(f"v_accvgpr_write_b32 a{AZ+i}, 0")
        b.e(f"""v_mov_b32 v{V_M16}, 0xffff
                v_and_b32 v6, 31, v{V_LANE}
                v_lshrrev_b32 v2, 5, v{V_LANE}
                v_lshlrev_b32 v3, 2, v2
                v_sub_u32 v3, v3, v6
                v_mov_b32 v4, {NEGBIG:#x}""")
        for r in range(16):
            kk = 8*(r//4) + r % 4
            b.e(f"v_cmp_lt_i32 vcc, {-kk}, v3")
            b.e("s_nop 1")
            b.e(f"v_cndmask_b32 v{MASK+r}, 0, v4, vcc")
        b.e("""v_and_b32 v5, 15, v6
               v_xor_b32 v5, v5, v2
               v_lshlrev_b32 v5, 4, v5
               v_lshl_add_u32 v5, v6, 8, v5""")
        for s in range(8):
            b.e(f"v_xor_b32 v{KADDR+s}, {32*s}, v5")
        b.e(f"""v_bfe_u32 v5, v{V_LANE}, 2, 2
                v_lshl_add_u32 v6, v2, 2, v5
                v_lshlrev_b32 v6, 8, v6
                v_lshl_add_u32 v6, v5, 6, v6
                v_bfe_u32 v7, v{V_LANE}, 4, 1
                v_lshl_add_u32 v6, v7, 5, v6
                v_and_b32 v7, 3, v{V_LANE}
                v_lshl_add_u32 v6, v7, 3, v6""")
        for db in range(4):
            b.e(f"v_xor_b32 v{VADDR+db}, {64*db}, v6")
        b.e(f"""s_and_b32 s{S_T0}, s{S_N+3}, 0x600
                s_cmp_eq_u32 s{S_T0}, 0
                s_cselect_b32 s{S_WSEL}, 2, 3""")
        return b

    def qstate(self, b):
        N = S_N
        b.e(f"""s_lshl_b32 s{S_T0}, s{S_HP}, 9
                s_add_u32 s{S_QSO}, s{N}, s{S_T0}
                s_lshl_b32 s{S_T0}, s{S_PAIR}, 8
                s_add_u32 s{S_T0+1}, s{S_QSO}, s{S_T0}
                s_lshl_b32 s{S_T0}, s{S_W}, 13
                s_add_u32 s{S_T0+2}, s{S_T0}, 0x20000
                s_add_u32 s{S_QM02}, s{S_T0}, 0x10000
                s_lshl_b32 s{S_T0}, s{S_HP}, 14
                s_add_u32 s{S_T0+5}, s{S_T0}, 0x20000
                s_add_u32 s{S_T0+6}, s{S_T0}, 0x22000
                s_lshl_b32 s{S_T0}, s{S_PAIR}, 13
                s_add_u32 s{S_T0+7}, s{S_T0+5}, s{S_T0}
                s_add_u32 s{S_QSO2}, s{S_QSO}, 256
                s_bitcmp1_b32 s{N+3}, 10
                s_cselect_b32 s{S_QSO}, s{S_T0+1}, s{S_QSO}
                s_cselect_b32 s{S_QST}, s{S_T0+5}, s{S_T0+2}
                s_cselect_b32 s{S_QST2}, s{S_T0+6}, s{S_QM02}
                s_cselect_b32 s{S_QM0}, s{S_T0+7}, s{S_T0+2}
                s_cselect_b32 s{S_QMADJ}, s{S_T0+7}, s{S_QM02}
                s_cselect_b32 s{S_QCNT}, 9, 17
                s_cselect_b32 s{S_QADJV}, 0, {(256 - 131072) & 0xffffffff:#x}
                s_cselect_b32 s{S_Q2}, 0, 1
                s_lshr_b32 s{S_T0}, s{S_J+3}, 10
                s_and_b32 s{S_Q2}, s{S_Q2}, s{S_T0}
                s_cmp_eq_u32 s{S_Q2}, 1
                s_cselect_b32 s{S_QCNT}, 9, s{S_QCNT}
                s_cselect_b32 s{S_QADJV}, 0, s{S_QADJV}
                s_cselect_b32 s{S_QMADJ}, s{S_QM0}, s{S_QMADJ}
                s_bitcmp1_b32 s{N+3}, 11
                s_cselect_b32 s{S_QCNT}, s{S_QCNT}, 0
                s_cselect_b32 s{S_Q2}, s{S_Q2}, 0""")

    def qrem(self):
        b = Block("qrem")
        for i in range(4):
            b.e(f"L_qrem_{i}:")
            for t in Q_POST[2:]: b.e(t)
            b.e(f"""s_cmp_gt_i32 s{S_QCNT}, 0
                    s_cbranch_scc0 L_qrem_done
                    s_mov_b32 s{S_QUSE}, s{S_QSO}
                    s_mov_b32 m0, s{S_QM0}""")
            b.e(Q_POST[0])
            b.e(dma_q(i))
            b.e(Q_POST[1])
        b.e("s_branch L_qrem_0")
        b.e("L_qrem_done:")
        b.e(f"""s_cmp_eq_u32 s{S_Q2}, 0
                s_cbranch_scc1 L_qrem_ret
                s_mov_b32 s{S_Q2}, 0
                s_mov_b32 s{S_QSO}, s{S_QSO2}
                s_mov_b32 s{S_QM0}, s{S_QM02}
                s_mov_b32 s{S_QMADJ}, s{S_QM02}
                s_mov_b32 s{S_QCNT}, 9
                s_branch L_qrem_0
                L_qrem_ret:""")
        b.e(f"s_setpc_b64 {sr(S_RET,2)}")
        return b

    def jobstart(self):
        b = Block("jobstart")
        J = S_J
        b.e("L_job:")
        b.e(f"""s_bitcmp1_b32 s{S_N+3}, 11
                s_cbranch_scc0 L_end""")
        for i in range(8):
            b.e(f"v_and_or_b32 v{P+i}, v{KADDR+i}, v{V_M16}, s{S_QST}")
            b.e(f"v_and_or_b32 v{P+8+i}, v{KADDR+i}, v{V_M16}, s{S_QST2}")
        b.e(f"""s_mov_b64 {sr(J,2)}, {sr(S_N,2)}
                s_mov_b64 {sr(J+2,2)}, {sr(S_N+2,2)}
                s_mov_b64 {sr(S_N,2)}, {sr(S_JT,2)}
                s_mov_b64 {sr(S_N+2,2)}, {sr(S_JT+2,2)}
                s_mov_b64 {sr(S_JT,2)}, {sr(S_JT+4,2)}
                s_mov_b64 {sr(S_JT+2,2)}, {sr(S_JT+6,2)}
                s_mov_b64 {sr(S_JT+6,2)}, 0
                s_lshl_b32 s{S_T0}, s{S_HP}, 9
                s_add_u32 s{S_QOFF}, s{J}, s{S_T0}""")
        for i in range(8):
            b.e(f"v_and_or_b32 v{KADDR+i}, v{KADDR+i}, v{V_M16}, s{S_RING}")
        for i in range(4):
            b.e(f"v_and_or_b32 v{VADDR+i}, v{VADDR+i}, v{V_M16}, s{S_RING}")
        b.e(f"""s_bitcmp1_b32 s{J+3}, 8
                s_cselect_b32 s{S_T0}, -1, 0""")
        for r in range(16):
            b.e(f"v_and_b32 v{MJ+r}, s{S_T0}, v{MASK+r}")
        b.e(f"""s_sub_u32 s{S_REM}, s{J+2}, 2
                s_sub_u32 s{S_VOFF}, s{J+1}, 0x10000
                s_cmp_ge_u32 s{S_WSEL}, 2
                s_cbranch_scc1 L_js_first""")
        self.qstate(b)
        b.e(f"""s_cmp_eq_u32 s{S_WSEL}, 0
                s_cbranch_scc1 L_js_w0
                s_waitcnt vmcnt(18)
                L_js_w0:
                s_waitcnt vmcnt(26)
                s_barrier""")
        stamp(b)
        self.qreads(b, 0)
        self.qreads(b, 1)
        b.e("s_branch L_js_go")
        b.e("L_js_first:")
        b.e(f"""s_cmp_eq_u32 s{S_WSEL}, 2
                s_cbranch_scc1 L_js_w2
                s_waitcnt vmcnt(0)
                L_js_w2:
                s_waitcnt vmcnt(8)
                s_barrier""")
        stamp(b)
        self.qreads(b, 0)
        self.qreads(b, 1)
        for kind, u in (('K', 1), ('V', 0)):
            for t in self.pf_group(kind, u, S_J): b.e(t)
        b.e(f"s_call_b64 {sr(S_RET,2)}, L_qrem_0")
        self.qstate(b)
        b.e("L_js_go:")
        stamp(b)
        b.e(f"""s_bitcmp1_b32 s{J+3}, 10
                s_cbranch_scc1 L_pre_B""")
        return b

    def pre(self, shape):
        J = S_J
        b = Block(f"pre_{shape}")
        b.e(f"L_pre_{shape}:")
        b.e(f"s_bitcmp1_b32 s{J+3}, 9")
        b.e(f"s_cbranch_scc0 L_head_{shape}_0")
        return b

    def build(self, wg):
        pro = self.prologue()
        self.add(pro)
        self.add(self.jobstart())
        for shape in 'AB':
            self.add(self.pre(shape))
            self.add(self.idle_step(shape))
            self.add(self.head(shape, 1))
            self.add(self.head(shape, 0))
            al = Block(f"align_{shape}"); al.e(".p2align 6"); self.add(al)
            for ph in range(4): self.add(self.step(shape, ph))
            for ph in range(4): self.add(self.tail(shape, ph))
            self.add(self.epilogue(shape))
        self.add(self.qrem())
        for x in range(2):
            for par in range(2): self.add(self.rare(x, par))
        self.add(self.stubs)
        end = Block("end"); end.e("L_end:")
        if STAMPS:
            end.e("s_cmp_ge_u32 s2, 256"); end.e("s_cbranch_scc1 L_end2")
            stamp(end); end.e("s_waitcnt vmcnt(0)"); stamp(end); stamp(end, True)
            end.e("L_end2:")
        if DBG:
            end.e("s_cmp_ge_u32 s2, 256"); end.e("s_cbranch_scc1 L_end2")
            end.e("""s_waitcnt vmcnt(0)
                     s_memrealtime s[80:81]
                     s_memtime s[98:99]
                     s_waitcnt lgkmcnt(0)
                     s_sub_u32 s98, s98, s82
                     v_mov_b32 v6, s80
                     v_mov_b32 v7, 4
                     v_mov_b32 v5, s98
                     v_mov_b32 v4, 8
                     v_mov_b32 v3, s83
                     v_mov_b32 v2, 0
                     s_cmp_lg_u32 s27, 3
                     s_cbranch_scc1 L_end2
                     s_mov_b64 exec, 1
                     buffer_atomic_umax v6, v7, s[84:87], 0 offen
                     buffer_atomic_umax v5, v4, s[84:87], 0 offen
                     buffer_atomic_umax v3, v2, s[84:87], 0 offen
                     v_mov_b32 v6, s100
                     v_mov_b32 v7, s101
                     s_nop 1
                     buffer_atomic_umax v6, v2, s[84:87], 0 offen offset:12
                     buffer_atomic_add v6, v2, s[84:87], 0 offen offset:16
                     buffer_atomic_add v7, v2, s[84:87], 0 offen offset:20
                     buffer_atomic_add v5, v2, s[84:87], 0 offen offset:24""")
            end.e("L_end2:")
        end.e("s_endpgm"); self.add(end)
        B = self.blocks
        paths = []
        for sh in 'AB':
            lp = [f"loop_{sh}_{p}" for p in range(4)]
            paths.append(["prologue", "jobstart", f"pre_{sh}", f"head_{sh}_0"] + lp + lp)
            paths.append([f"pre_{sh}", f"idle_{sh}", f"head_{sh}_1"] + lp[1:] + lp)
            for ph in range(4):
                paths.append([lp[(ph-2) % 4], lp[(ph-1) % 4], f"tail_{sh}_{ph}", f"epi_{sh}", "jobstart"])
            paths.append([f"head_{sh}_0", f"tail_{sh}_0", f"epi_{sh}"])
            paths.append([f"head_{sh}_1", f"tail_{sh}_1", f"epi_{sh}"])
        paths.append(["qrem"])
        for x in range(2):
            for par in range(2): paths.append([f"rare_{x}_{par}", "loop_A_0"])
        nprob = 0
        for p in paths:
            for skip in (False, True):
                seq = sum((B[n].ins for n in p), [])
                if skip: seq = prune_forward_skips(seq)
                for pr in check_hazards(seq, "+".join(p)):
                    print("HAZARD", pr, file=sys.stderr); nprob += 1
        assert nprob == 0
        txt = ""
        for n in self.order: txt += B[n].text()
        return txt

def prune_forward_skips(seq):
    out = []; i = 0
    labels = {ins.text[:-1]: k for k, ins in enumerate(seq) if ins.kind == 'label' and ins.text.endswith(':')}
    while i < len(seq):
        ins = seq[i]; out.append(ins)
        if ins.op.startswith('s_cbranch_scc'):
            tgt = ins.ops[0]
            if tgt in labels and labels[tgt] > i and not tgt.startswith(('L_tail', 'L_loop', 'L_head', 'L_pre', 'L_end', 'L_epi')):
                i = labels[tgt]; continue
        i += 1
    return out

def table(wg):
    CU = sched.CU
    words = []
    for w in range(256):
        ent = [[], []]
        assert len(wg[w]) <= 3
        for (seq, kvh, kind, b, N) in wg[w]:
            s0, Ls = CU[seq], CU[seq+1] - CU[seq]
            def q(bb): return ((s0 + 32*bb) * 16 + kvh * 4) * 256
            def kv(t): return ((s0 + 32*t) * 4 + kvh) * 256
            def nv(bb): return max(0, min(32, Ls - 32*bb))
            if kind == 'A':
                ent[0] += [q(b), kv(b+1), N, nv(b) | 1 << 8 | 1 << 9 | 1 << 11]
                ent[1] += [q(b+1), kv(b+1), N, nv(b+1) | 1 << 8 | 1 << 11]
            else:
                n = b + 1
                assert n >= 2 and N == (n + 1) // 2
                n0 = n - N
                d = N - n0
                ent[0] += [q(b), kv(b), N, nv(b) | 1 << 8 | 1 << 10 | 1 << 11]
                ent[1] += [q(b), kv(n0 - 1 + d), N, nv(b) | d << 9 | 1 << 10 | 1 << 11]
        for p in range(2):
            words += ent[p] + [0] * (16 - len(ent[p]))
    return words

THRB, OVH = 32, 4.0
def main(out):
    wg, st = sched.build(THRB, OVH)
    g = Gen()
    body = g.build(wg)
    hdr = open(f"cdna_kernels/{NAME}.s.ref").read().split("; Override launch")[0]
    s = hdr
    s += f"; @launch grid=(256,1,1) block=(256,1,1) lds={LDS_BYTES}\n"
    s += f""".amdgcn_target "amdgcn-amd-amdhsa--gfx950"
.text
.globl {NAME}_kernel
.p2align 8
.type {NAME}_kernel,@function
{NAME}_kernel:
"""
    s += body
    s += ".p2align 6\n.type jobtab,@object\njobtab:\n"
    w = table(wg)
    for i in range(0, len(w), 8):
        s += ".long " + ", ".join(f"{x:#x}" for x in w[i:i+8]) + "\n"
    s += f".size jobtab, {len(w)*4}\n"
    s += f""".section .rodata,"a"
.p2align 6
.amdhsa_kernel {NAME}_kernel
  .amdhsa_next_free_vgpr 392
  .amdhsa_next_free_sgpr 102
  .amdhsa_accum_offset 256
  .amdhsa_group_segment_fixed_size 0
  .amdhsa_kernarg_size 56
  .amdhsa_user_sgpr_count 2
  .amdhsa_user_sgpr_kernarg_segment_ptr 1
  .amdhsa_system_sgpr_workgroup_id_x 1
.end_amdhsa_kernel
"""
    open(out, "w").write(s)

if __name__ == "__main__":
    args = [a for a in sys.argv[1:] if not a.startswith('-')]
    if '-stamps' in sys.argv: STAMPS = True
    for a in sys.argv[1:]:
        if a.startswith('-D'):
            k, v = a[2:].split('=')
            globals()[k] = (' nt' if v == '1' else '') if k.startswith('NT_') else eval(v)
    main(args[0] if args else f"cdna_kernels/{NAME}.s")
```

```python
import sys, struct, math
from asmlib import *
import sched

NAME = "standalone__ragged_sequences_varlen_flash_attn__ragged"
T_TOK = 7180
QBYTES = T_TOK * 16 * 256
KBYTES = T_TOK * 4 * 256
def f32(x): return struct.unpack('<I', struct.pack('<f', x))[0]
C_SCALE = f32(math.log2(math.e) / math.sqrt(128.0))
THR = f32(2.0 ** 40)
NEGBIG = f32(-1.0e30)
LDS_BYTES = 163840
NT_Q = ' nt'; NT_KV = ''; NT_O = ' sc0 sc1'
WARM = False
CODEWARM = False
DBG = False
NT_PF = ' nt'
X_NOST = False; X_NOSTG = False; X_NOPF = False; X_NOBAR = False; X_NOVM = False; X_NODMA = False; X_NOLDS = False; X_NOSALU = False

DKR = {'A': [0, 1], 'B': [48, 49, 50, 51]}
DVR = {'A': [78, 79], 'B': [52, 53, 54, 55]}
DQ = 8
V_WARM = 12
V_DUMMY = 13
V_M16 = 14; V_LANE = 15
MASK = 16; MJ = 32
VADDR = 56; KADDR = 60
MC = 68; L = 70; TT = 74
P = 80; S = 96; O = 128
AQ = 0; AK = 64; AV = 96; AZ = 128
OV = MJ; STW = MJ + 4; STR = MJ + 5; XW = MJ + 6; XR = MJ + 7; XM = MJ + 8; XN = MJ + 9; E0 = MJ + 10; E1 = MJ + 11; FO = MJ + 12; FT = MJ + 14
S_FIRST, S_WSEL, S_Q2, S_QSO2, S_QM02 = 3, 4, 5, 6, 7
SRD_Q, SRD_K, SRD_V, SRD_O = 8, 12, 16, 20
S_C, S_THR, S_OOB, S_W, S_PAIR, S_HP = 24, 25, 26, 27, 28, 29
S_RET = 30; S_TAB = 32; S_J = 36
S_QOFF, S_VOFF, S_REM, S_KUSE, S_VUSE, S_KT, S_QCNT, S_QSO, S_QM0, S_QUSE = range(40, 50)
S_T0 = 50
S_M0K = 60; S_M0V = 64; S_RING = 68; S_QADJ = 69; S_QADJV = 70; S_QMADJ = 71
S_N = 72; S_TRASH = 76; S_QST = 77; S_STG = 78; S_QST2 = 79
S_JT = 88; S_MBA = 96; S_MBB = 97

def vr(b, n): return f"v[{b}:{b+n-1}]"
def ar(b, n): return f"a[{b}:{b+n-1}]"
def sr(b, n): return f"s[{b}:{b+n-1}]"
G = {'A': 2, 'B': 4}

def mfma_q(x, s, first_c):
    c = first_c if s == 0 else vr(S + 16*x, 16)
    return f"v_mfma_f32_32x32x16_bf16 {vr(S+16*x,16)}, {ar(AK+4*s,4)}, {ar(AQ+32*x+4*s,4)}, {c}"
def mfma_v(x, j):
    u, db = j // 4, j % 4
    o = vr(O + 64*x + 16*db, 16)
    return f"v_mfma_f32_32x32x16_bf16 {o}, {ar(AV+4*j,4)}, {vr(P+8*x+4*u,4)}, {o}"
def mfma_z(i):
    return f"v_mfma_f32_32x32x16_bf16 {vr(O+16*i,16)}, {ar(AZ,4)}, {ar(AZ,4)}, 0"
def kread(s, slot):
    return f"ds_read_b128 {ar(AK+4*s,4)}, v{KADDR+s} offset:{slot*8192}"
def vread(j, e, slot):
    u, db = j // 4, j % 4
    return f"ds_read_b64_tr_b16 {ar(AV+4*j+2*e,2)}, v{VADDR+db} offset:{32768 + slot*8192 + (16*u+8*e)*256}"
def dma_k(sh, i, suse=S_KUSE):
    return f"buffer_load_dwordx4 v{DKR[sh][i]}, {sr(SRD_K,4)}, s{suse} offen offset:{i*1024}{NT_KV if suse == S_KUSE else NT_PF} lds"
def dma_v(sh, i, suse=S_VUSE):
    return f"buffer_load_dwordx4 v{DVR[sh][i]}, {sr(SRD_V,4)}, s{suse} offen offset:{i*1024}{NT_KV if suse == S_VUSE else NT_PF} lds"
def dma_q(i=0):
    return f"buffer_load_dwordx4 v{DQ+i}, {sr(SRD_Q,4)}, s{S_QUSE} offen{NT_Q} lds"
Q_PRE = [f"s_cmp_gt_i32 s{S_QCNT}, 0",
         f"s_cselect_b32 s{S_QUSE}, s{S_QSO}, s{S_OOB}",
         f"s_cselect_b32 m0, s{S_QM0}, s{S_TRASH}"]
Q_POST = [f"s_add_u32 s{S_QSO}, s{S_QSO}, 0x4000",
          f"s_add_u32 s{S_QM0}, s{S_QM0}, 0x400",
          f"s_sub_u32 s{S_QCNT}, s{S_QCNT}, 1",
          f"s_cmp_eq_u32 s{S_QCNT}, 8",
          f"s_cselect_b32 s{S_QADJ}, s{S_QADJV}, 0",
          f"s_cselect_b32 s{S_QM0}, s{S_QMADJ}, s{S_QM0}",
          f"s_add_u32 s{S_QSO}, s{S_QSO}, s{S_QADJ}"]
def opF(x, e): return f"v_fma_f32 v{TT+e%4}, v{S+16*x+e}, s{S_C}, -v{MC+x}"
def opE(x, e): return f"v_exp_f32 v{TT+e%4}, v{TT+e%4}"
def opA(x, e, par):
    src = L + 2*x + (par ^ 1) if e == 0 else L + 2*x + par
    return f"v_add_f32 v{L+2*x+par}, v{src}, v{TT+e%4}"
def opC(x, k): return f"v_cvt_pk_bf16_f32 v{P+8*x+k}, v{TT+(2*k)%4}, v{TT+(2*k+1)%4}"

STAMPS = False
def stamp(b, real=False):
    if not STAMPS: return
    b.e(f"""{'s_memrealtime' if real else 's_memtime'} s[80:81]
            s_waitcnt lgkmcnt(0)
            v_mov_b32 v6, s80
            v_mov_b32 v7, s82
            s_add_u32 s82, s82, 4
            buffer_store_dword v6, v7, s[84:87], 0 offen""")

def cost(t):
    op = t.split()[0]
    if op.endswith(':'): return 0
    if op.startswith('v_exp') or op.startswith('v_rcp') or op.startswith('buffer'): return 2
    if op == 's_nop': return int(t.split()[1]) + 1
    return 1

def weave(b, mfmas, mem, valu, budget=6, mem_per_gap=2):
    mem = list(mem); valu = list(valu)
    for m in mfmas:
        b.e(m)
        used = 0
        for _ in range(mem_per_gap):
            if mem:
                it = mem.pop(0)
                for t in it: b.e(t); used += cost(t)
        while valu and used + cost(valu[0]) <= budget:
            t = valu.pop(0); b.e(t); used += cost(t)
    for it in mem:
        for t in it: b.e(t)
    for t in valu: b.e(t)

class Gen:
    def __init__(self):
        self.blocks = {}
        self.order = []
        self.stubs = Block("stubs")
        self.nstub = 0
    def add(self, b):
        self.blocks[b.name] = b; self.order.append(b.name); return b
    def uid(self):
        self.nstub += 1; return self.nstub

    def check_site(self, b, x, par):
        k = self.uid()
        b.e(f"s_cbranch_vccnz L_stub{k}")
        b.e(f"L_ret{k}:")
        self.stubs.e(f"L_stub{k}:")
        self.stubs.e(f"s_call_b64 {sr(S_RET,2)}, L_rare_{x}_{par}")
        self.stubs.e(f"s_branch L_ret{k}")

    def plan_mem(self, g):
        cap = [1 if i % 2 == 0 else 2 for i in range(32)]
        cap[15] = 0; cap[31] = 0
        place = {i: [] for i in range(32)}
        kd = [17, 19, 21, 23] if g == 4 else [19, 23]
        vd = [7, 9, 11, 13] if g == 4 else [9, 13]
        for i, gp in enumerate(kd): place[gp].append(('KD', i)); cap[gp] -= 2
        for i, gp in enumerate(vd): place[gp].append(('VD', i)); cap[gp] -= 2
        place[27].append(('QD',)); cap[27] -= 2
        items = [(16 + s, 30, ('K', s)) for s in range(8)]
        for j in range(8):
            for e in range(2): items.append((24 + j, 38 if j < 4 else 42, ('V', j, e)))
        pend = list(items)
        for t in range(16, 48):
            gp = t % 32
            while cap[gp] > 0:
                c = [it for it in pend if it[0] <= t]
                if not c: break
                it = min(c, key=lambda i: (i[1], i[0]))
                assert it[1] >= t, ("deadline miss", it, t)
                pend.remove(it); cap[gp] -= 1
                place[gp].append(it[2])
        assert not pend
        for gp in place:
            place[gp].sort(key=lambda it: 0 if it[0] in ('K', 'V') else 1)
        return place

    def sm_ops(self, gap, ph):
        ops = []
        s_par = ph % 2
        def elem(idx):
            if 0 <= idx < 16: return (1, idx, s_par, 'b0')
            if 16 <= idx < 32: return (0, idx - 16, s_par ^ 1, 'a1')
            if 32 <= idx < 48: return (1, idx - 32, s_par ^ 1, 'b1')
            return None
        x, e, par, tag = elem(gap + 1); ops.append((tag, opA(x, e, par)))
        if gap % 2 == 0:
            x, e, par, tag = elem(gap); ops.append((tag, opC(x, e // 2)))
        x, e, par, tag = elem(gap + 3); ops.append((tag, opF(x, e)))
        x, e, par, tag = elem(gap + 2); ops.append((tag, opE(x, e)))
        return ops

    def sm_stream(self, gaps, ph, tags):
        out = []
        for gp in gaps:
            ops = [t for tag, t in self.sm_ops(gp, ph) if tag in tags]
            ex = [t for t in ops if t.startswith('v_exp')]
            ot = [t for t in ops if not t.startswith('v_exp')]
            if ex and ot: out += ex + ot
            elif ex: out += ex + ["s_nop 0"]
            else: out += (["s_nop 0"] if ot else []) + ot
        return out

    def step(self, shape, ph):
        g = G[shape]
        b = Block(f"loop_{shape}_{ph}")
        b.e(f"L_loop_{shape}_{ph}:")
        place = self.plan_mem(g)
        free = {i: [] for i in range(32)}
        seq = []
        for gp in range(32):
            for it in place[gp]:
                if it[0] in ('K', 'V'): seq.append((gp, it))
        def count_after(need_items, wait_gap):
            lin = [(gp - 32, it) for gp, it in seq] + [(gp, it) for gp, it in seq]
            lin = [(t, it) for t, it in lin if t < wait_gap]
            last = max(max(i for i, (t, it) in enumerate(lin) if it == n) for n in need_items)
            return len(lin) - 1 - last
        wk = count_after([('K', s) for s in range(8)], 31)
        free[31].append(f"s_waitcnt lgkmcnt({wk})")
        wv0 = count_after([('V', j, e) for j in range(4) for e in range(2)], 7)
        free[7].append(f"s_waitcnt lgkmcnt({wv0})")
        wv1 = count_after([('V', j, e) for j in range(4, 8) for e in range(2)], 11)
        free[11].append(f"s_waitcnt lgkmcnt({wv1})")
        assert max(wk, wv0, wv1) <= 15
        if not X_NOVM: free[15].append(f"s_waitcnt vmcnt({4*g+2})")
        if not X_NOBAR: free[16].append("s_barrier")
        free[20].append(Q_PRE[0]); free[22].append(Q_PRE[1]); free[24].append(Q_PRE[2])
        free[28].append(Q_POST[0]); free[29].append(Q_POST[1])
        free[5].append(Q_POST[2]); free[6].append(Q_POST[3]); free[8].append(Q_POST[4]); free[9].append(Q_POST[5]); free[19].append(Q_POST[6])
        free[0].append(f"s_cmp_gt_i32 s{S_REM}, 0")
        free[1].append(f"s_cselect_b32 s{S_VUSE}, s{S_VOFF}, s{S_OOB}")
        free[2].append(f"s_cselect_b32 m0, s{S_M0V + (ph+3)%4}, s{S_TRASH}")
        free[3].append(f"s_sub_u32 s{S_KT}, s{S_VOFF}, 0x10000")
        free[4].append(f"s_sub_u32 s{S_VOFF}, s{S_VOFF}, 0x8000")
        free[10].append(f"s_cmp_gt_i32 s{S_REM}, 2")
        free[12].append(f"s_cselect_b32 s{S_KUSE}, s{S_KT}, s{S_OOB}")
        free[14].append(f"s_cselect_b32 m0, s{S_M0K + (ph+5)%4}, s{S_TRASH}")
        free[18].append(f"s_sub_u32 s{S_REM}, s{S_REM}, 1")
        free[30].append(f"s_cmp_ge_i32 s{S_REM}, -1")
        for gp in range(32):
            if gp < 8: b.e(mfma_q(0, gp, "0"))
            elif gp < 16: b.e(mfma_v(0, gp - 8))
            elif gp < 24: b.e(mfma_q(1, gp - 16, "0"))
            else: b.e(mfma_v(1, gp - 24))
            for t in free[gp]: b.e(t)
            for it in place[gp]:
                if X_NODMA and it[0] in ('KD', 'VD', 'QD'): continue
                if X_NOLDS and it[0] in ('K', 'V'): continue
                if it[0] == 'K': b.e(kread(it[1], (ph + 2) % 4 if gp >= 16 else (ph + 1) % 4))
                elif it[0] == 'V': b.e(vread(it[1], it[2], (ph + 1) % 4 if gp >= 16 else ph % 4))
                elif it[0] == 'KD': b.e(dma_k(shape, it[1]))
                elif it[0] == 'VD': b.e(dma_v(shape, it[1]))
                elif it[0] == 'QD': b.e(dma_q(ph))
            ops = self.sm_ops(gp, ph)
            if gp == 15:
                b.e(f"v_cmp_nge_f32 vcc, s{S_THR}, v{L+2*1+ph%2}")
            if gp == 31:
                b.e(f"v_cmp_nge_f32 vcc, s{S_THR}, v{L+2*0+(ph+1)%2}")
            for tag, t in ops: b.e(t)
            if gp == 15: self.check_site(b, 1, ph % 2)
            if gp == 31: self.check_site(b, 0, (ph + 1) % 2)
        b.e(f"s_cbranch_scc0 L_tail_{shape}_{(ph+1)%4}")
        if ph == 3: b.e(f"s_branch L_loop_{shape}_0")
        return b

    def dma_v_part(self, b, ph, shape):
        for t in Q_POST[2:]: b.e(t)
        b.e(f"""s_cmp_gt_i32 s{S_REM}, 0
                s_cselect_b32 s{S_VUSE}, s{S_VOFF}, s{S_OOB}
                s_cselect_b32 m0, s{S_M0V + (ph+3)%4}, s{S_TRASH}
                s_sub_u32 s{S_KT}, s{S_VOFF}, 0x10000
                s_sub_u32 s{S_VOFF}, s{S_VOFF}, 0x8000""")
        for i in range(G[shape]): b.e(dma_v(shape, i))
    def dma_k_part(self, ph, shape):
        return [f"s_cmp_gt_i32 s{S_REM}, 2",
                f"s_cselect_b32 s{S_KUSE}, s{S_KT}, s{S_OOB}",
                f"s_cselect_b32 m0, s{S_M0K + (ph+5)%4}, s{S_TRASH}",
                f"s_sub_u32 s{S_REM}, s{S_REM}, 1"] + [dma_k(shape, i) for i in range(G[shape])]
    def dma_q_part(self, dummy=False):
        if dummy:
            return [f"s_mov_b32 m0, s{S_TRASH}", f"s_mov_b32 s{S_QUSE}, s{S_OOB}", f"s_add_u32 s{S_QCNT}, s{S_QCNT}, 1", dma_q()]
        return Q_PRE + [Q_POST[0], dma_q(0), Q_POST[1]]

    def warm(self):
        N = S_N
        k = self.uid()
        o = [f"s_bitcmp1_b32 s{N+3}, 11", f"s_cbranch_scc0 L_wm{k}",
             f"s_cmp_eq_u32 s{S_HP}, 0", f"s_cbranch_scc0 L_wv{k}"]
        for u in range(4):
            o += [f"s_sub_u32 s{S_T0}, s{N+1}, {u*0x8000}", f"s_cmp_gt_i32 s{N+2}, {u}", f"s_cselect_b32 s{S_T0}, s{S_T0}, s{S_OOB}",
                  f"buffer_load_dword v{V_DUMMY}, v{V_WARM}, {sr(SRD_K,4)}, s{S_T0} offen"]
        o += [f"s_branch L_wm{k}", f"L_wv{k}:"]
        for u in range(3):
            o += [f"s_sub_u32 s{S_T0}, s{N+1}, {u*0x8000}", f"s_cmp_gt_i32 s{N+2}, {u}", f"s_cselect_b32 s{S_T0}, s{S_T0}, s{S_OOB}",
                  f"buffer_load_dword v{V_DUMMY}, v{V_WARM}, {sr(SRD_V,4)}, s{S_T0} offen"]
        o += [f"L_wm{k}:"]
        return o

    def pf_group(self, kind, u, N=S_N):
        k = self.uid()
        m0r = (S_M0K if kind == 'K' else S_M0V) + u
        d = dma_k if kind == 'K' else dma_v
        T = S_T0 + 4
        return [f"s_sub_u32 s{T}, s{N+1}, {u*0x8000}",
                f"s_cmp_gt_i32 s{N+2}, {u}",
                f"s_cselect_b32 s{T}, s{T}, s{S_OOB}",
                f"s_cselect_b32 m0, s{m0r}, s{S_TRASH}",
                f"s_bitcmp1_b32 s{N+3}, 10",
                f"s_cbranch_scc1 L_pfb{k}",
                d('A', 0, T), d('A', 1, T),
                f"s_branch L_pfe{k}",
                f"L_pfb{k}:",
                d('B', 0, T), d('B', 1, T), d('B', 2, T), d('B', 3, T),
                f"L_pfe{k}:"]

    def hookB(self, b, clear, wait_first, wait_norm):
        k = self.uid()
        b.e(f"""s_cmp_eq_u32 s{S_FIRST}, 0
                s_cbranch_scc1 L_hb{k}""")
        for kind, u in (('K', 2), ('V', 1), ('K', 3)):
            for t in self.pf_group(kind, u, S_J): b.e(t)
        b.e(f"""s_mov_b32 m0, s{S_TRASH}
                s_mov_b32 s{S_QUSE}, s{S_OOB}""")
        for _ in range(5): b.e(dma_q())
        if clear: b.e(f"s_mov_b32 s{S_FIRST}, 0")
        b.e(f"s_waitcnt vmcnt({wait_first})")
        b.e(f"s_branch L_hc{k}")
        b.e(f"L_hb{k}:")
        b.e(f"s_waitcnt vmcnt({wait_norm})")
        b.e(f"L_hc{k}:")

    def idle_step(self, shape):
        g = G[shape]
        ph = 3
        b = Block(f"idle_{shape}")
        b.e(f"L_idle_{shape}:")
        self.dma_v_part(b, ph, shape)
        self.hookB(b, shape == 'B', (16 if shape == 'A' else 0) + g + 3*g + 5, 4*g)
        b.e("s_barrier")
        for t in self.dma_k_part(ph, shape): b.e(t)
        for t in self.dma_q_part(True): b.e(t)
        return b

    def qreads(self, b, x):
        for s in range(8):
            b.e(f"ds_read_b128 {ar(AQ+32*x+4*s,4)}, v{P+8*x+s}")

    def maxtree(self, x):
        s0 = S + 16*x; t = 2 + 2*x
        o = [f"v_max3_f32 v{t}, v{s0}, v{s0+1}, v{s0+2}",
             f"v_max3_f32 v{t+1}, v{s0+3}, v{s0+4}, v{s0+5}"]
        for i in range(6, 14, 4):
            o += [f"v_max3_f32 v{t}, v{t}, v{s0+i}, v{s0+i+1}", f"v_max3_f32 v{t+1}, v{t+1}, v{s0+i+2}, v{s0+i+3}"]
        o += [f"v_max3_f32 v{t}, v{t}, v{s0+14}, v{s0+15}",
              f"v_max_f32 v{t}, v{t}, v{t+1}",
              f"v_mov_b32 v{t+1}, v{t}",
              "s_nop 1",
              f"v_permlane32_swap_b32 v{t}, v{t+1}",
              f"v_max_f32 v{t}, v{t}, v{t+1}",
              f"v_mul_f32 v{MC+x}, s{S_C}, v{t}"]
        return o

    def head(self, shape, f):
        g = G[shape]
        ph = (f - 1) % 4
        b = Block(f"head_{shape}_{f}")
        b.e(f"L_head_{shape}_{f}:")
        if shape == 'A' and f == 1:
            b.e(f"""s_cmp_eq_u32 s{S_FIRST}, 0
                    s_cbranch_scc1 L_hq1_skip
                    s_mov_b32 s{S_FIRST}, 0
                    s_waitcnt vmcnt({g + 3*g + 5 + g + 1})""")
            self.qreads(b, 0); self.qreads(b, 1)
            b.e("L_hq1_skip:")
        for s in range(8): b.e(kread(s, f % 4))
        b.e(mfma_z(0))
        self.dma_v_part(b, ph, shape)
        b.e(mfma_z(1))
        b.e(f"v_mov_b32 v{L+0+((f-1)%2)}, 0")
        b.e(f"v_mov_b32 v{L+2+((f-1)%2)}, 0")
        b.e(mfma_z(2))
        b.e("s_waitcnt lgkmcnt(0)")
        for s in range(8): b.e(mfma_q(0, s, vr(MJ, 16)))
        if shape == 'A' and f == 0:
            b.e(f"""s_cmp_eq_u32 s{S_FIRST}, 0
                    s_cbranch_scc1 L_hq_skip
                    s_waitcnt vmcnt({3*g})""")
            self.qreads(b, 1)
            b.e("s_waitcnt lgkmcnt(0)")
            b.e("L_hq_skip:")
        sma = self.sm_stream(range(13, 29), ph, ('a1',))
        rest = self.sm_stream(range(29, 32), ph, ('a1', 'b1'))
        valu = ["s_nop 5", "s_nop 4"] + self.maxtree(0) + sma
        qb = [mfma_q(1, s, vr(MJ, 16)) for s in range(8)]
        tmp = Block()
        vv = list(valu)
        for m in qb:
            tmp.e(m); used = 0
            while vv and used + cost(vv[0]) <= 6:
                t = vv.pop(0); tmp.e(t); used += cost(t)
        b.ext(tmp)
        if f == 0: self.hookB(b, True, g + 3*g + 5, 4*g)
        else: b.e(f"s_waitcnt vmcnt({4*g+1})")
        b.e("s_barrier")
        mem = [[kread(s, (f + 1) % 4)] for s in range(8)] + [self.dma_k_part(ph, shape)] + [self.dma_q_part(f == 0)]
        mem += [[vread(j, 0, f % 4), vread(j, 1, f % 4)] for j in range(8)]
        n1 = 12
        valu2 = vv[:n1] + self.maxtree(1) + vv[n1:] + rest
        weave(b, [mfma_z(i) for i in range(3, 8)], mem, valu2, budget=7, mem_per_gap=4)
        if WARM:
            for t in self.warm(): b.e(t)
        if DBG:
            b.e("""s_memtime s[80:81]
                   s_waitcnt lgkmcnt(0)
                   s_sub_u32 s101, s101, s80
                   s_sub_u32 s80, s80, s82
                   s_cmp_eq_u32 s100, 0
                   s_cselect_b32 s100, s80, s100""")
        b.e("s_waitcnt lgkmcnt(0)")
        stamp(b)
        b.e(f"s_cmp_ge_i32 s{S_REM}, -1")
        b.e(f"s_cbranch_scc0 L_tail_{shape}_{f%4}")
        b.e(f"s_branch L_loop_{shape}_{f%4}")
        return b

    def pfsetup(self):
        N = S_N
        o = [f"s_lshl_b32 s{S_T0}, s{S_PAIR}, 16",
             f"s_bitcmp1_b32 s{N+3}, 10",
             f"s_cselect_b32 s{S_RING}, s{S_T0}, 0",
             f"s_cselect_b32 s{S_T0}, s{S_MBB}, s{S_MBA}"]
        for i in range(4):
            o.append(f"s_add_u32 s{S_M0K+i}, s{S_T0}, {i*8192}")
            o.append(f"s_add_u32 s{S_M0V+i}, s{S_T0}, {32768+i*8192}")
        return o

    def tail(self, shape, ph):
        g = G[shape]
        b = Block(f"tail_{shape}_{ph}")
        b.e(f"L_tail_{shape}_{ph}:")
        stamp(b)
        if DBG:
            b.e("""s_memtime s[80:81]
                   s_waitcnt lgkmcnt(0)
                   s_add_u32 s101, s101, s80""")
        place = self.plan_mem(g)
        for gp in range(16):
            for it in place[gp]:
                if it[0] == 'V': b.e(vread(it[1], it[2], ph % 4))
        k = self.uid()
        b.e(f"""s_lshl_b32 s{S_T0}, s{S_Q2}, 4
                s_max_i32 s{S_T0}, s{S_T0}, s{S_QCNT}
                s_cmp_gt_i32 s{S_T0}, 1
                s_cbranch_scc0 L_nq{k}
                s_call_b64 {sr(S_RET,2)}, L_qrem_{ph}
                L_nq{k}:""")
        smb = self.sm_stream(range(0, 15), ph, ('b0',))
        for t in smb[:10]: b.e(t)
        b.e("s_waitcnt lgkmcnt(0)")
        pfs = self.pfsetup()
        weave(b, [mfma_v(0, j) for j in range(8)],
              [["s_barrier"] + pfs[:4], pfs[4:8], pfs[8:], self.pf_group('K', 0), [], [], self.pf_group('K', 1)], smb[10:], budget=8, mem_per_gap=1)
        b.e(f"v_cmp_nge_f32 vcc, s{S_THR}, v{L+2*1+ph%2}")
        b.e("s_nop 1")
        self.check_site(b, 1, ph % 2)
        ec = [f"v_mov_b32 v2, v{L+0+ph%2}", f"v_mov_b32 v3, v{L+0+ph%2}", f"v_mov_b32 v4, v{L+2+ph%2}", f"v_mov_b32 v5, v{L+2+ph%2}"] + self.epi_common(shape)
        weave(b, [mfma_v(1, j) for j in range(8)], [], ec, budget=6)
        b.e(f"s_branch L_epi_{shape}")
        return b

    def store_chunks(self, b, subs, scale_ops, extra):
        extra = list(extra)
        chunks = [(x, dh) for x in subs for dh in range(2)]
        R = S + 16
        WA = P + 8
        def reads(ci):
            o = []
            for kk in range(4):
                off = (ci % 2) * 4096 + kk * 1024
                if kk % 2 == 0: o.append(f"ds_read_b128 {vr(R+4*kk,4)}, v{STR} offset:{off}")
                else: o.append(f"ds_read2st64_b64 {vr(R+4*kk,4)}, v{E0} offset0:{off//512} offset1:{off//512}")
            return o
        def stores(ci):
            x, dh = chunks[ci]
            return [f"buffer_store_dwordx4 {vr(R+4*kk,4)}, v{OV+kk}, {sr(SRD_O,4)}, s{S_QOFF} offen offset:{x*256 + dh*128}{NT_O}" for kk in range(4)]
        nch = len(chunks)
        for ci in range(nch + 2):
            st = stores(ci - 2) if ci >= 2 else []
            if st: b.e(f"s_waitcnt lgkmcnt({8 if ci - 1 < nch else 0})")
            if ci < nch:
                x, dh = chunks[ci]
                n = 0
                for dbl in range(2):
                    db = 2*dh + dbl
                    for gq in range(4):
                        tb = P + 4 * (n % 2); X = S + 2 * n
                        for q in range(0, 4, 2):
                            for t in scale_ops(x, 16*db + 4*gq + q, tb + q): b.e(t)
                        b.e(f"v_cvt_pk_bf16_f32 v{X}, v{tb}, v{tb+1}")
                        b.e(f"v_cvt_pk_bf16_f32 v{X+1}, v{tb+2}, v{tb+3}")
                        if st and n % 2 == 0: b.e(st.pop(0))
                        elif extra and n % 4 == 1:
                            for t in extra.pop(0): b.e(t)
                        n += 1
            else:
                while extra:
                    for t in extra.pop(0): b.e(t)
            for t in st: b.e(t)
            if 1 <= ci <= nch:
                for kk in range(4):
                    off = ((ci - 1) % 2) * 4096 + kk * 1024
                    if kk % 2 == 0: b.e(f"ds_read_b128 {vr(R+4*kk,4)}, v{STR} offset:{off}")
                    else:
                        b.e(f"ds_read_b64 {vr(R+4*kk,2)}, v{STR} offset:{off+8}")
                        b.e(f"ds_read_b64 {vr(R+4*kk+2,2)}, v{STR} offset:{off}")
            if ci < nch:
                for n in range(8):
                    b.e(f"ds_write_b64 v{WA+n}, {vr(S+2*n,2)} offset:{(ci%2)*4096}")

    def epi_common(self, shape):
        J = S_J
        o = f"""s_and_b32 s{S_T0}, s{J+3}, 63
                v_and_b32 v6, 31, v{V_LANE}
                v_lshrrev_b32 v7, 5, v{V_LANE}
                v_lshlrev_b32 v{STW}, 7, v6
                v_bfe_u32 v{E0}, v{V_LANE}, 3, 1
                v_xor_b32 v7, v7, v{E0}
                v_lshl_add_u32 v{STW}, v7, 3, v{STW}
                v_and_b32 v6, 7, v{V_LANE}
                v_lshl_add_u32 v{STW}, v6, 4, v{STW}
                v_add_u32 v{STW}, s{S_STG}, v{STW}
                v_permlane32_swap_b32 v2, v3
                v_permlane32_swap_b32 v4, v5
                v_lshrrev_b32 v6, 3, v{V_LANE}
                v_and_b32 v7, 7, v{V_LANE}
                v_add_f32 v2, v2, v3
                v_add_f32 v4, v4, v5
                v_xor_b32 v{STR}, v6, v7
                v_lshlrev_b32 v{STR}, 4, v{STR}
                v_lshl_add_u32 v{STR}, v6, 7, v{STR}
                v_add_u32 v{STR}, s{S_STG}, v{STR}
                v_lshlrev_b32 v7, 4, v7
                v_lshl_add_u32 v7, v6, 12, v7
                v_mov_b32 v{E1}, s{S_OOB}""".split('\n')
        o = [t.strip() for t in o]
        for kk in range(4):
            o += [f"v_add_u32 v{E0}, {8*kk}, v6",
                  f"v_cmp_gt_u32 vcc, s{S_T0}, v{E0}",
                  f"v_add_u32 v{E0}, {kk*32768}, v7",
                  "s_nop 0",
                  f"v_cndmask_b32 v{OV+kk}, v{E1}, v{E0}, vcc"]
        if shape == 'A':
            o += ["v_rcp_f32 v2, v2", "v_rcp_f32 v4, v4"]
        else:
            o += [f"s_lshl_b32 s{S_T0}, s{S_PAIR}, 16",
                  f"s_lshl_b32 s{S_T0+1}, s{S_HP}, 14",
                  f"s_add_u32 s{S_T0}, s{S_T0}, s{S_T0+1}",
                  f"s_add_u32 s{S_T0}, s{S_T0}, 0x8000",
                  f"s_xor_b32 s{S_T0+1}, s{S_T0}, 0x10000",
                  f"v_lshlrev_b32 v6, 4, v{V_LANE}",
                  f"v_add_u32 v{XW}, s{S_T0}, v6",
                  f"v_add_u32 v{XR}, s{S_T0+1}, v6",
                  f"s_lshl_b32 s{S_T0}, s{S_W}, 9",
                  f"s_add_u32 s{S_T0}, s{S_T0}, 0x6000",
                  f"s_xor_b32 s{S_T0+1}, s{S_T0}, 0x400",
                  f"v_lshlrev_b32 v6, 3, v{V_LANE}",
                  f"v_add_u32 v{XM}, s{S_T0}, v6",
                  f"v_add_u32 v{XN}, s{S_T0+1}, v6"]
        return o

    def epilogue(self, shape):
        b = Block(f"epi_{shape}")
        b.e(f"L_epi_{shape}:")
        stamp(b)
        for n in range(8): b.e(f"v_xor_b32 v{P+8+n}, {n*16}, v{STW}")
        def ex(): return [self.pf_group('V', 0), self.pf_group('K', 2), self.pf_group('V', 1), self.pf_group('K', 3)]
        if shape == 'A':
            b.e("s_nop 0")
            self.store_chunks(b, (0, 1), lambda x, i, d: [f"v_pk_mul_f32 {vr(d,2)}, {vr(O+64*x+i,2)}, {vr(2+2*x,2)} op_sel_hi:[1,0]"], ex())
            b.e(f"s_mov_b32 s{S_WSEL}, 0")
            b.e("s_branch L_job")
        else:
            b.e(f"""s_cmp_eq_u32 s{S_PAIR}, 0
                    s_cbranch_scc0 L_epiB_1""")
            for own in range(2):
                oth = own ^ 1
                if own == 1: b.e("L_epiB_1:")
                b.e(f"v_mov_b32 v6, v{MC+oth}")
                b.e(f"v_mov_b32 v7, v{2+2*oth}")
                b.e("s_nop 7")
                b.e(f"ds_write_b64 v{XM}, v[6:7]")
                for i in range(16):
                    b.e(f"ds_write_b128 v{XW}, {vr(O+64*oth+4*i,4)} offset:{i*1024}")
                b.e("s_waitcnt lgkmcnt(0)")
                b.e("s_barrier")
                b.e(f"ds_read_b64 v[6:7], v{XN}")
                for i in range(16):
                    b.e(f"ds_read_b128 {vr(O+64*oth+4*i,4)}, v{XR} offset:{i*1024}")
                lo = 2 + 2*own
                b.e(f"""s_waitcnt lgkmcnt(15)
                        s_nop 0
                        s_waitcnt lgkmcnt(15)
                        v_max_f32 v{FO}, v{MC+own}, v6
                        v_sub_f32 v{FT}, v6, v{FO}
                        v_sub_f32 v{FO}, v{MC+own}, v{FO}
                        v_exp_f32 v{FT}, v{FT}
                        v_exp_f32 v{FO}, v{FO}
                        s_nop 0
                        v_mul_f32 v7, v7, v{FT}
                        v_fma_f32 v7, v{lo}, v{FO}, v7
                        v_rcp_f32 v7, v7
                        s_nop 0
                        v_mul_f32 v{FO}, v{FO}, v7
                        v_mul_f32 v{FT}, v{FT}, v7
                        s_waitcnt lgkmcnt(0)
                        s_barrier""")
                self.store_chunks(b, (own,), lambda x, i, d, own=own, oth=oth: [
                    f"v_pk_mul_f32 {vr(d,2)}, {vr(O+64*own+i,2)}, {vr(FO,2)} op_sel_hi:[1,0]",
                    f"v_pk_fma_f32 {vr(d,2)}, {vr(O+64*oth+i,2)}, {vr(FT,2)}, {vr(d,2)} op_sel_hi:[1,0,1]"], ex())
                b.e(f"s_mov_b32 s{S_WSEL}, 1")
                b.e("s_branch L_job")
        return b

    def rare(self, x, par):
        b = Block(f"rare_{x}_{par}")
        b.e(f"L_rare_{x}_{par}:")
        s0 = S + 16*x
        b.e("s_nop 15")
        b.e(f"v_max3_f32 v2, v{s0}, v{s0+1}, v{s0+2}")
        for i in range(3, 15, 2):
            b.e(f"v_max3_f32 v2, v2, v{s0+i}, v{s0+i+1}")
        b.e(f"v_max_f32 v2, v2, v{s0+15}")
        b.e("v_mov_b32 v3, v2")
        b.e("s_nop 1")
        b.e("v_permlane32_swap_b32 v2, v3")
        b.e("v_max_f32 v2, v2, v3")
        b.e(f"v_mul_f32 v2, s{S_C}, v2")
        b.e(f"v_max_f32 v2, v2, v{MC+x}")
        b.e(f"v_sub_f32 v3, v{MC+x}, v2")
        b.e("v_exp_f32 v3, v3")
        b.e(f"v_mov_b32 v{MC+x}, v2")
        b.e(f"v_mul_f32 v{L+2*x+par}, v3, v{L+2*x+(par^1)}")
        for i in range(64):
            b.e(f"v_mul_f32 v{O+64*x+i}, v3, v{O+64*x+i}")
        for k in range(8):
            b.e(f"v_fma_f32 v4, v{s0+2*k}, s{S_C}, -v{MC+x}")
            b.e(f"v_fma_f32 v5, v{s0+2*k+1}, s{S_C}, -v{MC+x}")
            b.e("v_exp_f32 v4, v4")
            b.e("v_exp_f32 v5, v5")
            b.e("s_nop 0")
            b.e(f"v_add_f32 v{L+2*x+par}, v{L+2*x+par}, v4")
            b.e(f"v_add_f32 v{L+2*x+par}, v{L+2*x+par}, v5")
            b.e(f"v_cvt_pk_bf16_f32 v{P+8*x+k}, v4, v5")
        b.e("s_nop 1")
        b.e(f"s_setpc_b64 {sr(S_RET,2)}")
        return b

    def prologue(self):
        b = Block("prologue")
        b.e(f"""s_cmp_ge_u32 s2, 256
                s_cbranch_scc1 L_end
                s_load_dwordx4 s[52:55], s[0:1], 0
                s_load_dwordx2 s[56:57], s[0:1], 16
                s_load_dwordx2 s[58:59], s[0:1], 32
                s_getpc_b64 {sr(S_TAB,2)}""")
        b.e("L_pc:")
        b.e(f"""s_add_u32 s{S_TAB}, s{S_TAB}, jobtab-L_pc
                s_addc_u32 s{S_TAB+1}, s{S_TAB+1}, 0
                v_lshrrev_b32 v1, 6, v0
                v_and_b32 v{V_LANE}, 63, v0
                v_readfirstlane_b32 s{S_W}, v1
                v_lshlrev_b32 v2, 7, v0
                s_getpc_b64 s[34:35]
                {'global_load_dword v13, v2, s[34:35]' if CODEWARM else 's_nop 0'}
                v_add_u32 v2, 0x8000, v2
                {'global_load_dword v13, v2, s[34:35]' if CODEWARM else 's_nop 0'}
                s_lshr_b32 s{S_PAIR}, s{S_W}, 1
                s_and_b32 s{S_HP}, s{S_W}, 1
                s_lshl_b32 s3, s2, 7
                s_lshl_b32 s4, s{S_PAIR}, 6
                s_add_u32 s3, s3, s4
                s_add_u32 s{S_TAB}, s{S_TAB}, s3
                s_addc_u32 s{S_TAB+1}, s{S_TAB+1}, 0
                s_load_dwordx4 {sr(S_N,4)}, {sr(S_TAB,2)}, 0
                s_load_dwordx8 {sr(S_JT,8)}, {sr(S_TAB,2)}, 16
                s_mov_b32 s{S_C}, {C_SCALE:#x}
                s_mov_b32 s{S_THR}, {THR:#x}
                s_mov_b32 s{S_OOB}, 0x80000000
                s_mov_b32 s{S_TRASH}, 0x3c000
                s_lshl_b32 s{S_STG}, s{S_PAIR}, 16
                s_lshl_b32 s3, s{S_HP}, 13
                s_add_u32 s{S_STG}, s{S_STG}, s3
                s_add_u32 s{S_STG}, s{S_STG}, 0xc000
                s_lshl_b32 s{S_MBA}, s{S_W}, 11
                s_lshl_b32 s{S_MBB}, s{S_PAIR}, 16
                s_lshl_b32 s3, s{S_HP}, 12
                s_add_u32 s{S_MBB}, s{S_MBB}, s3""")
        b.e(f"""v_lshrrev_b32 v5, 4, v{V_LANE}
                v_and_b32 v6, 15, v{V_LANE}
                v_xor_b32 v7, v6, v5
                v_lshlrev_b32 v7, 4, v7
                v_lshl_add_u32 v2, v5, 10, v7
                v_lshl_add_u32 v{DQ}, v5, 12, v7
                v_xor_b32 v{DQ+1}, 64, v{DQ}
                v_xor_b32 v{DQ+2}, 0x80, v{DQ}
                v_xor_b32 v{DQ+3}, 0xc0, v{DQ}
                v_lshrrev_b32 v4, 1, v{V_LANE}
                v_and_b32 v{V_WARM}, 1, v{V_LANE}
                v_lshlrev_b32 v{V_WARM}, 7, v{V_WARM}
                v_lshl_add_u32 v{V_WARM}, v4, 10, v{V_WARM}
                v_lshlrev_b32 v7, 2, v5
                v_xor_b32 v7, v6, v7
                v_lshlrev_b32 v7, 4, v7
                v_lshl_add_u32 v3, v5, 10, v7""")
        for sh in 'AB':
            b.e(f"s_lshl_b32 s5, s{S_W}, 1" if sh == 'A' else f"s_lshl_b32 s5, s{S_HP}, 2")
            for i in range(G[sh]):
                b.e(f"""s_add_u32 s3, s5, {i}
                        s_and_b32 s4, s3, 3
                        s_lshl_b32 s4, s4, 6
                        s_lshl_b32 s3, s3, 12
                        s_sub_u32 s3, s3, {i*1024}
                        v_xor_b32 v{DKR[sh][i]}, s4, v2
                        v_add_u32 v{DKR[sh][i]}, s3, v{DKR[sh][i]}
                        v_add_u32 v{DVR[sh][i]}, s3, v3""")
        b.e(f"""s_waitcnt lgkmcnt(0)
                s_mov_b32 s{SRD_Q}, s52
                s_mov_b32 s{SRD_Q+1}, s53
                s_mov_b32 s{SRD_Q+2}, {QBYTES}
                s_mov_b32 s{SRD_Q+3}, 0x00020000
                s_mov_b32 s{SRD_K}, s54
                s_mov_b32 s{SRD_K+1}, s55
                s_mov_b32 s{SRD_K+2}, {KBYTES}
                s_mov_b32 s{SRD_K+3}, 0x00020000
                s_mov_b32 s{SRD_V}, s56
                s_mov_b32 s{SRD_V+1}, s57
                s_mov_b32 s{SRD_V+2}, {KBYTES}
                s_mov_b32 s{SRD_V+3}, 0x00020000
                s_mov_b32 s{SRD_O}, s58
                s_mov_b32 s{SRD_O+1}, s59
                s_mov_b32 s{SRD_O+2}, {QBYTES}
                s_mov_b32 s{SRD_O+3}, 0x00020000""")
        if STAMPS:
            b.e(f"""s_load_dwordx2 s[84:85], s[0:1], 48
                    s_waitcnt lgkmcnt(0)
                    s_mov_b32 s86, 0x1000000
                    s_mov_b32 s87, 0x00020000
                    s_lshl_b32 s82, s2, 2
                    s_add_u32 s82, s82, s{S_W}
                    s_lshl_b32 s82, s82, 8""")
            stamp(b, True)
            stamp(b)
        if DBG:
            b.e(f"""s_load_dwordx2 s[84:85], s[0:1], 40
                    s_memrealtime s[80:81]
                    s_memtime s[82:83]
                    s_waitcnt lgkmcnt(0)
                    s_mov_b32 s86, 256
                    s_mov_b32 s87, 0x00020000
                    s_not_b32 s83, s80
                    s_mov_b32 s100, 0
                    s_mov_b32 s101, 0""")
        b.e(f"""s_mov_b32 s{S_J+3}, 0
                s_mov_b32 s{S_FIRST}, 1""")
        for t in self.pfsetup(): b.e(t)
        for t in self.pf_group('K', 0): b.e(t)
        self.qstate(b)
        b.e(f"""s_and_b32 s{S_T0}, s{S_N+3}, 0x600
                s_cmp_eq_u32 s{S_T0}, 0x200
                s_cbranch_scc1 L_noq""")
        b.e(f"s_call_b64 {sr(S_RET,2)}, L_qrem_0")
        b.e("L_noq:")
        for i in range(4): b.e(f"v_accvgpr_write_b32 a{AZ+i}, 0")
        b.e(f"""v_mov_b32 v{V_M16}, 0xffff
                v_and_b32 v6, 31, v{V_LANE}
                v_lshrrev_b32 v2, 5, v{V_LANE}
                v_lshlrev_b32 v3, 2, v2
                v_sub_u32 v3, v3, v6
                v_mov_b32 v4, {NEGBIG:#x}""")
        for r in range(16):
            kk = 8*(r//4) + r % 4
            b.e(f"v_cmp_lt_i32 vcc, {-kk}, v3")
            b.e("s_nop 1")
            b.e(f"v_cndmask_b32 v{MASK+r}, 0, v4, vcc")
        b.e("""v_and_b32 v5, 15, v6
               v_xor_b32 v5, v5, v2
               v_lshlrev_b32 v5, 4, v5
               v_lshl_add_u32 v5, v6, 8, v5""")
        for s in range(8):
            b.e(f"v_xor_b32 v{KADDR+s}, {32*s}, v5")
        b.e(f"""v_bfe_u32 v5, v{V_LANE}, 2, 2
                v_lshl_add_u32 v6, v2, 2, v5
                v_lshlrev_b32 v6, 8, v6
                v_lshl_add_u32 v6, v5, 6, v6
                v_bfe_u32 v7, v{V_LANE}, 4, 1
                v_lshl_add_u32 v6, v7, 5, v6
                v_and_b32 v7, 3, v{V_LANE}
                v_lshl_add_u32 v6, v7, 3, v6""")
        for db in range(4):
            b.e(f"v_xor_b32 v{VADDR+db}, {64*db}, v6")
        b.e(f"""s_and_b32 s{S_T0}, s{S_N+3}, 0x600
                s_cmp_eq_u32 s{S_T0}, 0
                s_cselect_b32 s{S_WSEL}, 2, 3""")
        return b

    def qstate(self, b):
        N = S_N
        b.e(f"""s_lshl_b32 s{S_T0}, s{S_HP}, 9
                s_add_u32 s{S_QSO}, s{N}, s{S_T0}
                s_lshl_b32 s{S_T0}, s{S_PAIR}, 8
                s_add_u32 s{S_T0+1}, s{S_QSO}, s{S_T0}
                s_lshl_b32 s{S_T0}, s{S_W}, 13
                s_add_u32 s{S_T0+2}, s{S_T0}, 0x20000
                s_add_u32 s{S_QM02}, s{S_T0}, 0x10000
                s_lshl_b32 s{S_T0}, s{S_HP}, 14
                s_add_u32 s{S_T0+5}, s{S_T0}, 0x20000
                s_add_u32 s{S_T0+6}, s{S_T0}, 0x22000
                s_lshl_b32 s{S_T0}, s{S_PAIR}, 13
                s_add_u32 s{S_T0+7}, s{S_T0+5}, s{S_T0}
                s_add_u32 s{S_QSO2}, s{S_QSO}, 256
                s_bitcmp1_b32 s{N+3}, 10
                s_cselect_b32 s{S_QSO}, s{S_T0+1}, s{S_QSO}
                s_cselect_b32 s{S_QST}, s{S_T0+5}, s{S_T0+2}
                s_cselect_b32 s{S_QST2}, s{S_T0+6}, s{S_QM02}
                s_cselect_b32 s{S_QM0}, s{S_T0+7}, s{S_T0+2}
                s_cselect_b32 s{S_QMADJ}, s{S_T0+7}, s{S_QM02}
                s_cselect_b32 s{S_QCNT}, 9, 17
                s_cselect_b32 s{S_QADJV}, 0, {(256 - 131072) & 0xffffffff:#x}
                s_cselect_b32 s{S_Q2}, 0, 1
                s_lshr_b32 s{S_T0}, s{S_J+3}, 10
                s_and_b32 s{S_Q2}, s{S_Q2}, s{S_T0}
                s_cmp_eq_u32 s{S_Q2}, 1
                s_cselect_b32 s{S_QCNT}, 9, s{S_QCNT}
                s_cselect_b32 s{S_QADJV}, 0, s{S_QADJV}
                s_cselect_b32 s{S_QMADJ}, s{S_QM0}, s{S_QMADJ}
                s_bitcmp1_b32 s{N+3}, 11
                s_cselect_b32 s{S_QCNT}, s{S_QCNT}, 0
                s_cselect_b32 s{S_Q2}, s{S_Q2}, 0""")

    def qrem(self):
        b = Block("qrem")
        for i in range(4):
            b.e(f"L_qrem_{i}:")
            for t in Q_POST[2:]: b.e(t)
            b.e(f"""s_cmp_gt_i32 s{S_QCNT}, 0
                    s_cbranch_scc0 L_qrem_done
                    s_mov_b32 s{S_QUSE}, s{S_QSO}
                    s_mov_b32 m0, s{S_QM0}""")
            b.e(Q_POST[0])
            b.e(dma_q(i))
            b.e(Q_POST[1])
        b.e("s_branch L_qrem_0")
        b.e("L_qrem_done:")
        b.e(f"""s_cmp_eq_u32 s{S_Q2}, 0
                s_cbranch_scc1 L_qrem_ret
                s_mov_b32 s{S_Q2}, 0
                s_mov_b32 s{S_QSO}, s{S_QSO2}
                s_mov_b32 s{S_QM0}, s{S_QM02}
                s_mov_b32 s{S_QMADJ}, s{S_QM02}
                s_mov_b32 s{S_QCNT}, 9
                s_branch L_qrem_0
                L_qrem_ret:""")
        b.e(f"s_setpc_b64 {sr(S_RET,2)}")
        return b

    def jobstart(self):
        b = Block("jobstart")
        J = S_J
        b.e("L_job:")
        b.e(f"""s_bitcmp1_b32 s{S_N+3}, 11
                s_cbranch_scc0 L_end""")
        for i in range(8):
            b.e(f"v_and_or_b32 v{P+i}, v{KADDR+i}, v{V_M16}, s{S_QST}")
            b.e(f"v_and_or_b32 v{P+8+i}, v{KADDR+i}, v{V_M16}, s{S_QST2}")
        b.e(f"""s_mov_b64 {sr(J,2)}, {sr(S_N,2)}
                s_mov_b64 {sr(J+2,2)}, {sr(S_N+2,2)}
                s_mov_b64 {sr(S_N,2)}, {sr(S_JT,2)}
                s_mov_b64 {sr(S_N+2,2)}, {sr(S_JT+2,2)}
                s_mov_b64 {sr(S_JT,2)}, {sr(S_JT+4,2)}
                s_mov_b64 {sr(S_JT+2,2)}, {sr(S_JT+6,2)}
                s_mov_b64 {sr(S_JT+6,2)}, 0
                s_lshl_b32 s{S_T0}, s{S_HP}, 9
                s_add_u32 s{S_QOFF}, s{J}, s{S_T0}""")
        for i in range(8):
            b.e(f"v_and_or_b32 v{KADDR+i}, v{KADDR+i}, v{V_M16}, s{S_RING}")
        for i in range(4):
            b.e(f"v_and_or_b32 v{VADDR+i}, v{VADDR+i}, v{V_M16}, s{S_RING}")
        b.e(f"""s_bitcmp1_b32 s{J+3}, 8
                s_cselect_b32 s{S_T0}, -1, 0""")
        for r in range(16):
            b.e(f"v_and_b32 v{MJ+r}, s{S_T0}, v{MASK+r}")
        b.e(f"""s_sub_u32 s{S_REM}, s{J+2}, 2
                s_sub_u32 s{S_VOFF}, s{J+1}, 0x10000
                s_cmp_ge_u32 s{S_WSEL}, 2
                s_cbranch_scc1 L_js_first""")
        self.qstate(b)
        b.e(f"""s_cmp_eq_u32 s{S_WSEL}, 0
                s_cbranch_scc1 L_js_w0
                s_waitcnt vmcnt(18)
                L_js_w0:
                s_waitcnt vmcnt(26)
                s_barrier""")
        stamp(b)
        self.qreads(b, 0)
        self.qreads(b, 1)
        b.e("s_branch L_js_go")
        b.e("L_js_first:")
        b.e(f"""s_cmp_eq_u32 s{S_WSEL}, 2
                s_cbranch_scc1 L_js_w2
                s_waitcnt vmcnt(0)
                L_js_w2:
                s_waitcnt vmcnt(8)
                s_barrier""")
        stamp(b)
        self.qreads(b, 0)
        self.qreads(b, 1)
        for kind, u in (('K', 1), ('V', 0)):
            for t in self.pf_group(kind, u, S_J): b.e(t)
        b.e(f"s_call_b64 {sr(S_RET,2)}, L_qrem_0")
        self.qstate(b)
        b.e("L_js_go:")
        stamp(b)
        b.e(f"""s_bitcmp1_b32 s{J+3}, 10
                s_cbranch_scc1 L_pre_B""")
        return b

    def pre(self, shape):
        J = S_J
        b = Block(f"pre_{shape}")
        b.e(f"L_pre_{shape}:")
        b.e(f"s_bitcmp1_b32 s{J+3}, 9")
        b.e(f"s_cbranch_scc0 L_head_{shape}_0")
        return b

    def build(self, wg):
        pro = self.prologue()
        self.add(pro)
        self.add(self.jobstart())
        for shape in 'AB':
            self.add(self.pre(shape))
            self.add(self.idle_step(shape))
            self.add(self.head(shape, 1))
            self.add(self.head(shape, 0))
            al = Block(f"align_{shape}"); al.e(".p2align 6"); self.add(al)
            for ph in range(4): self.add(self.step(shape, ph))
            for ph in range(4): self.add(self.tail(shape, ph))
            self.add(self.epilogue(shape))
        self.add(self.qrem())
        for x in range(2):
            for par in range(2): self.add(self.rare(x, par))
        self.add(self.stubs)
        end = Block("end"); end.e("L_end:")
        if STAMPS:
            end.e("s_cmp_ge_u32 s2, 256"); end.e("s_cbranch_scc1 L_end2")
            stamp(end); end.e("s_waitcnt vmcnt(0)"); stamp(end); stamp(end, True)
            end.e("L_end2:")
        if DBG:
            end.e("s_cmp_ge_u32 s2, 256"); end.e("s_cbranch_scc1 L_end2")
            end.e("""s_memtime s[80:81]
                     s_waitcnt lgkmcnt(0)
                     s_waitcnt vmcnt(0)
                     s_memtime s[98:99]
                     s_waitcnt lgkmcnt(0)
                     s_sub_u32 s98, s98, s82
                     s_sub_u32 s80, s80, s82
                     s_sub_u32 s80, s80, s101
                     s_sub_u32 s80, s80, s100
                     v_mov_b32 v4, s80
                     v_mov_b32 v5, s98
                     s_lshr_b32 s81, s2, 5
                     s_lshl_b32 s81, s81, 3
                     v_mov_b32 v2, s81
                     s_and_b32 s81, s2, 31
                     s_lshl_b32 s81, s81, 2
                     s_add_u32 s81, s81, s27
                     s_cmp_lg_u32 s81, 39
                     s_cbranch_scc1 L_end2
                     s_mov_b64 exec, 1
                     buffer_store_dwordx2 v[4:5], v2, s[84:87], 0 offen""")
            end.e("L_end2:")
        end.e("s_endpgm"); self.add(end)
        B = self.blocks
        paths = []
        for sh in 'AB':
            lp = [f"loop_{sh}_{p}" for p in range(4)]
            paths.append(["prologue", "jobstart", f"pre_{sh}", f"head_{sh}_0"] + lp + lp)
            paths.append([f"pre_{sh}", f"idle_{sh}", f"head_{sh}_1"] + lp[1:] + lp)
            for ph in range(4):
                paths.append([lp[(ph-2) % 4], lp[(ph-1) % 4], f"tail_{sh}_{ph}", f"epi_{sh}", "jobstart"])
            paths.append([f"head_{sh}_0", f"tail_{sh}_0", f"epi_{sh}"])
            paths.append([f"head_{sh}_1", f"tail_{sh}_1", f"epi_{sh}"])
        paths.append(["qrem"])
        for x in range(2):
            for par in range(2): paths.append([f"rare_{x}_{par}", "loop_A_0"])
        nprob = 0
        for p in paths:
            for skip in (False, True):
                seq = sum((B[n].ins for n in p), [])
                if skip: seq = prune_forward_skips(seq)
                for pr in check_hazards(seq, "+".join(p)):
                    print("HAZARD", pr, file=sys.stderr); nprob += 1
        assert nprob == 0
        txt = ""
        for n in self.order: txt += B[n].text()
        return txt

def prune_forward_skips(seq):
    out = []; i = 0
    labels = {ins.text[:-1]: k for k, ins in enumerate(seq) if ins.kind == 'label' and ins.text.endswith(':')}
    while i < len(seq):
        ins = seq[i]; out.append(ins)
        if ins.op.startswith('s_cbranch_scc'):
            tgt = ins.ops[0]
            if tgt in labels and labels[tgt] > i and not tgt.startswith(('L_tail', 'L_loop', 'L_head', 'L_pre', 'L_end', 'L_epi')):
                i = labels[tgt]; continue
        i += 1
    return out

def table(wg):
    CU = sched.CU
    words = []
    for w in range(256):
        ent = [[], []]
        assert len(wg[w]) <= 3
        for (seq, kvh, kind, b, N) in wg[w]:
            s0, Ls = CU[seq], CU[seq+1] - CU[seq]
            def q(bb): return ((s0 + 32*bb) * 16 + kvh * 4) * 256
            def kv(t): return ((s0 + 32*t) * 4 + kvh) * 256
            def nv(bb): return max(0, min(32, Ls - 32*bb))
            if kind == 'A':
                ent[0] += [q(b), kv(b+1), N, nv(b) | 1 << 8 | 1 << 9 | 1 << 11]
                ent[1] += [q(b+1), kv(b+1), N, nv(b+1) | 1 << 8 | 1 << 11]
            else:
                n = b + 1
                assert n >= 2 and N == (n + 1) // 2
                n0 = n - N
                d = N - n0
                ent[0] += [q(b), kv(b), N, nv(b) | 1 << 8 | 1 << 10 | 1 << 11]
                ent[1] += [q(b), kv(n0 - 1 + d), N, nv(b) | d << 9 | 1 << 10 | 1 << 11]
        for p in range(2):
            words += ent[p] + [0] * (16 - len(ent[p]))
    return words

THRB, OVH = 32, 4.0
def main(out):
    wg, st = sched.build(THRB, OVH)
    g = Gen()
    body = g.build(wg)
    hdr = open(f"cdna_kernels/{NAME}.s.ref").read().split("; Override launch")[0]
    s = hdr
    s += f"; @launch grid=(256,1,1) block=(256,1,1) lds={LDS_BYTES}\n"
    s += f""".amdgcn_target "amdgcn-amd-amdhsa--gfx950"
.text
.globl {NAME}_kernel
.p2align 8
.type {NAME}_kernel,@function
{NAME}_kernel:
"""
    s += body
    s += ".p2align 6\n.type jobtab,@object\njobtab:\n"
    w = table(wg)
    for i in range(0, len(w), 8):
        s += ".long " + ", ".join(f"{x:#x}" for x in w[i:i+8]) + "\n"
    s += f".size jobtab, {len(w)*4}\n"
    s += f""".section .rodata,"a"
.p2align 6
.amdhsa_kernel {NAME}_kernel
  .amdhsa_next_free_vgpr 392
  .amdhsa_next_free_sgpr 102
  .amdhsa_accum_offset 256
  .amdhsa_group_segment_fixed_size 0
  .amdhsa_kernarg_size 56
  .amdhsa_user_sgpr_count 2
  .amdhsa_user_sgpr_kernarg_segment_ptr 1
  .amdhsa_system_sgpr_workgroup_id_x 1
.end_amdhsa_kernel
"""
    open(out, "w").write(s)

if __name__ == "__main__":
    args = [a for a in sys.argv[1:] if not a.startswith('-')]
    if '-stamps' in sys.argv: STAMPS = True
    for a in sys.argv[1:]:
        if a.startswith('-D'):
            k, v = a[2:].split('=')
            globals()[k] = {'0': '', '1': ' nt', '2': ' sc1', '3': ' sc0 sc1', '4': ' sc1 nt', '5': ' sc0 sc1 nt', '6': ' sc0'}[v] if k.startswith('NT_') else eval(v)
    main(args[0] if args else f"cdna_kernels/{NAME}.s")
```
